```python
import torch

def _softmax(x, axis=-1):
    return torch.softmax(x, dim=axis)
def _gelu(x):
    return torch.nn.functional.gelu(x, approximate="tanh")
def _silu(x):
    return torch.nn.functional.silu(x)
def _sigmoid(x):
    return torch.sigmoid(x)
def _layernorm(x, axis=-1, eps=1e-5):
    m = x.mean(dim=axis, keepdim=True)
    v = x.var(dim=axis, keepdim=True, unbiased=False)
    return (x - m) / torch.sqrt(v + eps)
def _scatter_add(tgt, idx, src, axis=0):
    return tgt.clone().index_add_(axis, idx, src)
def _segment_sum(src, seg, n):
    out = torch.zeros((n,) + src.shape[1:], dtype=src.dtype)
    return out.index_add_(0, seg, src)
def _pad(x, pw):
    flat = tuple(v for pair in reversed(pw) for v in pair)
    return torch.nn.functional.pad(x, flat)

kernel_name = 'standalone__layernorm_linear__prompt'

def setup_inputs():

    _w = (lambda a: (lambda t: t.to(torch.bfloat16) if t.is_floating_point() else t)(torch.as_tensor(a)))
    B, S, D = 2, 2048, 1024
    return {
        "x": _w((lambda *s: torch.randn(*s, dtype=torch.bfloat16) * 0.05)(B, S, D)),
        "g": _w((lambda *s: torch.randn(*s, dtype=torch.bfloat16) * 0.05)(D) + 1.0),
        "b": _w((lambda *s: torch.randn(*s, dtype=torch.bfloat16) * 0.4)(D)),
        "w": _w((lambda *s: torch.randn(*s, dtype=torch.bfloat16) * 0.05)(D, D)),
    }

def reference(x, g, b, w):
    return (_layernorm(x, axis=-1) * g + b) @ w
```

```python
KN = "standalone__layernorm_linear__prompt_kernel"

class E:
    def __init__(s): s.L = []
    def __call__(s, x): s.L.append("  " + x)
    def lab(s, x): s.L.append(x + ":")
    def raw(s, x): s.L.append(x)
    def text(s): return "\n".join(s.L) + "\n"

def kd(e, name, vgpr, sgpr=96, agpr=0):
    e.raw('.section .rodata,"a"'); e.raw(".p2align 6")
    e.raw(f".amdhsa_kernel {name}")
    acc = (vgpr + 3) // 4 * 4
    for l in (f".amdhsa_next_free_vgpr {acc + agpr if agpr else vgpr}", f".amdhsa_next_free_sgpr {sgpr}", f".amdhsa_accum_offset {acc}",
              ".amdhsa_group_segment_fixed_size 0", ".amdhsa_kernarg_size 56", ".amdhsa_user_sgpr_count 2",
              ".amdhsa_user_sgpr_kernarg_segment_ptr 1", ".amdhsa_system_sgpr_workgroup_id_x 1",
              ".amdhsa_float_denorm_mode_32 3"):
        e(l)
    e.raw(".end_amdhsa_kernel")
    e.raw(".text")

def head(e, name):
    e.raw(f".globl {name}"); e.raw(".p2align 8"); e.raw(f".type {name},@function"); e.lab(name)
```

```python
import sys
sys.path.insert(0, "tools")
from gemm_lib import *

STG = 32768
NS = 4
T_DIAG = NS * STG
T_G = T_DIAG + 8192
T_B = T_G + 2048
T_Z = T_B + 2048
T_ST = T_Z + 2048
LDS_BYTES = T_ST + 1024
NT = 16

def gen(stamps=False, LA=2, xaux="nt", waux="", staux="", prio=1, touch=None, do_stats=True, do_cd=True, do_scale=True, do_cvt=True, do_dma=True, do_bar=True, do_tab=True, inloop=True, M4GAP=3):
    e = E()
    e.raw(f"; @launch grid=(256,1,1) block=(512,1,1) lds={LDS_BYTES}")
    e.raw('.amdgcn_target "amdgcn-amd-amdhsa--gfx950"'); e.raw(".text")
    head(e, KN)
    e("s_cmp_ge_u32 s2, 256"); e("s_cbranch_scc1 G_done")
    if stamps: e("s_memrealtime s[40:41]"); e("s_memtime s[46:47]")
    e("s_load_dwordx4 s[4:7], s[0:1], 0")
    e("s_load_dwordx4 s[16:19], s[0:1], 16")
    e("s_load_dwordx2 s[36:37], s[0:1], 32")
    if stamps: e("s_load_dwordx2 s[44:45], s[0:1], 48")
    e("v_lshrrev_b32 v1, 6, v0"); e("v_and_b32 v2, 63, v0")
    e("s_and_b32 s23, s2, 7"); e("s_lshr_b32 s24, s2, 3")
    e("v_readfirstlane_b32 s20, v1")
    e("s_lshl_b32 s21, s23, 2"); e("s_and_b32 s25, s24, 3"); e("s_add_u32 s21, s21, s25")
    e("s_lshr_b32 s22, s24, 2")
    e("s_cmp_ge_u32 s20, 4"); e("s_cbranch_scc1 L_consumer")
    DA, DB = 8, 12
    e("v_lshrrev_b32 v3, 3, v2"); e("v_and_b32 v4, 7, v2"); e("v_lshrrev_b32 v5, 4, v2")
    e("s_lshl_b32 s24, s20, 5"); e("v_add_u32 v3, s24, v3"); e("v_lshlrev_b32 v3, 11, v3")
    for i in range(2):
        e(f"v_add_u32 v6, {4*i}, v5"); e("v_xor_b32 v6, v6, v4"); e("v_lshlrev_b32 v6, 4, v6"); e(f"v_add_u32 v{DA+i}, v6, v3")
        if i: e(f"v_add_u32 v{DA+i}, {8*2048}, v{DA+i}")
    e(f"v_add_u32 v{DA+2}, {16*2048}, v{DA}"); e(f"v_add_u32 v{DA+3}, {16*2048}, v{DA+1}")
    e("s_lshl_b32 s24, s20, 4"); e("v_add_u32 v3, s24, v5"); e("v_lshlrev_b32 v3, 11, v3"); e("v_and_b32 v4, 15, v2")
    for h in range(2):
        e(f"v_add_u32 v6, {4*h}, v5"); e("v_lshlrev_b32 v6, 1, v6"); e("v_xor_b32 v6, v6, v4"); e("v_lshlrev_b32 v6, 4, v6")
        e(f"v_add_u32 v{DB+2*h}, v6, v3")
        if h: e(f"v_add_u32 v{DB+2}, {8*2048}, v{DB+2}")
        e(f"v_add_u32 v{DB+2*h+1}, {4*2048}, v{DB+2*h}")
    e("s_lshl_b32 s32, s21, 18"); e("s_lshl_b32 s33, s22, 8"); e("s_lshl_b32 s34, s20, 12")
    e("s_waitcnt lgkmcnt(0)")
    e("s_mov_b32 s8, s4"); e("s_and_b32 s9, s5, 0xffff"); e("s_mov_b32 s10, 0x800000"); e("s_mov_b32 s11, 0x20000")
    e("s_mov_b32 s12, s18"); e("s_and_b32 s13, s19, 0xffff"); e("s_mov_b32 s14, 0x200000"); e("s_mov_b32 s15, 0x20000")
    def dma_stage(t):
        slot = t % NS
        for idx in (0, 4, 1, 5, 2, 6, 3, 7):
            if idx < 4:
                e(f"s_add_u32 m0, s34, {slot*STG + idx*1024}"); e("s_nop 0")
                e(f"buffer_load_dwordx4 v{DA+idx}, s[8:11], s32 offen {xaux} lds")
            else:
                e(f"s_add_u32 m0, s34, {slot*STG + 16384 + (idx-4)*1024}"); e("s_nop 0")
                e(f"buffer_load_dwordx4 v{DB+idx-4}, s[12:15], s33 offen {waux} lds")
        e("s_add_u32 s32, s32, 128"); e(f"s_add_u32 s33, s33, {64*2048}")
    for t in range(LA + 1): dma_stage(t)
    issued = LA + 1
    e("v_lshlrev_b32 v16, 4, v2"); e("v_add_u32 v16, s34, v16")
    e("v_add_u32 v17, 0x10000, v16")
    for j in range(8): e(f"v_mov_b32 v{36+j}, 0")
    e("s_mov_b32 s35, 0x3f803f80")
    def stats_reads(t):
        slot = t % NS; hi = slot >= 2; b = (slot - (2 if hi else 0)) * STG
        for j in range(4): e(f"ds_read_b128 v[{20+4*j}:{23+4*j}], v{17 if hi else 16} offset:{b + j*1024}")
    def stats_acc():
        e("s_waitcnt lgkmcnt(0)")
        for q in range(4):
            for j in range(4):
                e(f"v_dot2c_f32_bf16 v{36+j}, s35, v{20+4*j+q}")
                e(f"v_dot2c_f32_bf16 v{40+j}, v{20+4*j+q}, v{20+4*j+q}")
    e(f"s_waitcnt vmcnt({8*(issued-1)})")
    if stamps: e("s_memrealtime s[50:51]")
    e("s_barrier")
    if do_stats: stats_reads(0); stats_acc()
    for t in range(NT - 1):
        e(f"s_waitcnt vmcnt({8*(issued - (t+2)) if do_dma else 0})")
        if do_bar: e("s_barrier")
        if do_stats: stats_reads(t + 1)
        if issued < NT:
            if do_dma: dma_stage(issued)
            issued += 1
        if do_stats: stats_acc()
    e("s_nop 2")
    for j in range(8):
        for sh in ("quad_perm:[1,0,3,2]", "quad_perm:[2,3,0,1]", "row_half_mirror"):
            e(f"v_add_f32_dpp v{36+j}, v{36+j}, v{36+j} {sh} row_mask:0xf bank_mask:0xf")
            e("s_nop 1")
    e("v_lshrrev_b32 v3, 3, v2"); e("s_lshl_b32 s24, s20, 5"); e("v_add_u32 v3, s24, v3"); e("v_lshlrev_b32 v3, 3, v3")
    e(f"v_add_u32 v3, {T_ST}, v3")
    for j in range(4):
        e(f"v_mul_f32 v{36+j}, 0x3a800000, v{36+j}")
        e(f"v_mul_f32 v{40+j}, 0x3a800000, v{40+j}")
        e(f"v_fma_f32 v{40+j}, -v{36+j}, v{36+j}, v{40+j}")
        e(f"v_max_f32 v{40+j}, 0, v{40+j}")
        e(f"v_add_f32 v{40+j}, 0x3727c5ac, v{40+j}")
        e(f"v_rsq_f32 v{44+2*j}, v{40+j}")
        e("s_nop 0")
        e(f"v_mul_f32 v{45+2*j}, v{36+j}, v{44+2*j}")
        e(f"v_sub_f32 v{45+2*j}, 0, v{45+2*j}")
        e(f"ds_write_b64 v3, v[{44+2*j}:{45+2*j}] offset:{j*64}")
    e("s_waitcnt lgkmcnt(0)")
    e("s_barrier")
    e("s_endpgm")
    e.lab("L_consumer")
    ACC, CD, XA, XB, WR, DG, GB, TT, WPA, WPB = 0, 64, 72, 104, 136, 144, 148, 152, 168, 176
    AX, AXH, AW, AWH, ADG, AGB = 184, 186, 188, 190, 192, 193
    VT = 194
    if prio: e(f"s_setprio {prio}")
    e("s_sub_u32 s20, s20, 4")
    e(f"v_mov_b32 v{VT+10}, v2")
    LN = VT + 10
    e("s_waitcnt lgkmcnt(0)")
    e("s_lshl_b32 s24, s20, 6"); e(f"v_add_u32 v{VT}, s24, v{LN}")
    e(f"v_lshrrev_b32 v{VT+1}, 2, v{VT}"); e(f"v_lshlrev_b32 v{VT+1}, 4, v{VT+1}")
    e(f"global_load_dwordx4 v[{XA}:{XA+3}], v{VT+1}, s[6:7]")
    e(f"global_load_dwordx4 v[{XA+4}:{XA+7}], v{VT+1}, s[6:7] offset:1024")
    e(f"v_lshlrev_b32 v{VT+2}, 3, v{VT}")
    e(f"global_load_dwordx2 v[{XA+8}:{XA+9}], v{VT+2}, s[6:7]")
    e(f"global_load_dwordx2 v[{XA+10}:{XA+11}], v{VT+2}, s[16:17]")
    e(f"v_and_b32 v{VT+3}, 3, v{LN}")
    e(f"v_mov_b32 v{VT+4}, 0"); e(f"v_mov_b32 v{VT+5}, 0")
    e(f"v_mov_b32 v{VT+6}, 0xffff"); e(f"v_mov_b32 v{VT+7}, 0xffff0000")
    for i, (dst, src) in enumerate(((4, 6), (4, 7), (5, 6), (5, 7))):
        e(f"v_cmp_eq_u32 vcc, {i}, v{VT+3}"); e("s_nop 1"); e(f"v_cndmask_b32 v{VT+dst}, v{VT+dst}, v{VT+src}, vcc")
    e(f"v_and_b32 v{VT+3}, 15, v{LN}"); e(f"v_lshrrev_b32 v{VT+6}, 4, v{LN}")
    e(f"v_lshrrev_b32 v{VT+7}, 1, v{VT+3}")
    e(f"v_lshlrev_b32 v{VT+8}, 7, v{VT+3}")
    for s in range(2):
        e(f"v_add_u32 v{VT+9}, {4*s}, v{VT+6}"); e(f"v_xor_b32 v{VT+9}, v{VT+9}, v{VT+7}"); e(f"v_lshlrev_b32 v{VT+9}, 4, v{VT+9}")
        e(f"v_add_u32 v{AX+s}, v{VT+8}, v{VT+9}"); e(f"v_add_u32 v{AXH+s}, 0x10000, v{AX+s}")
    e(f"v_lshrrev_b32 v{VT+7}, 2, v{VT+3}")
    e(f"v_and_b32 v{VT+8}, 1, v{VT+6}"); e(f"v_lshlrev_b32 v{VT+8}, 2, v{VT+8}"); e(f"v_or_b32 v{VT+8}, v{VT+8}, v{VT+7}")
    e(f"v_lshlrev_b32 v{VT+9}, 3, v{VT+6}"); e(f"v_add_u32 v{VT+9}, v{VT+9}, v{VT+7}"); e(f"v_lshlrev_b32 v{VT+9}, 8, v{VT+9}")
    e(f"v_and_b32 v{VT+7}, 3, v{LN}"); e(f"v_lshlrev_b32 v{VT+7}, 3, v{VT+7}"); e(f"v_add_u32 v{VT+9}, v{VT+9}, v{VT+7}")
    e(f"v_add_u32 v{VT+9}, 16384, v{VT+9}"); e("s_lshl_b32 s24, s20, 1")
    for nb in range(2):
        e(f"s_add_u32 s25, s24, {nb}"); e(f"v_xor_b32 v{VT+7}, s25, v{VT+8}"); e(f"v_lshlrev_b32 v{VT+7}, 5, v{VT+7}")
        e(f"v_add_u32 v{AW+nb}, v{VT+9}, v{VT+7}"); e(f"v_add_u32 v{AWH+nb}, 0x10000, v{AW+nb}")
    e(f"v_and_b32 v{VT+7}, 3, v{LN}"); e(f"v_lshlrev_b32 v{VT+7}, 4, v{VT+7}"); e(f"v_lshlrev_b32 v{VT+8}, 6, v{VT+6}")
    e(f"v_add_u32 v{VT+7}, v{VT+7}, v{VT+8}"); e(f"v_add_u32 v{ADG}, {T_DIAG}, v{VT+7}")
    e(f"v_min_u32 v{VT+7}, 2, v{VT+3}"); e(f"v_lshlrev_b32 v{VT+7}, 11, v{VT+7}"); e(f"v_lshlrev_b32 v{VT+8}, 4, v{VT+6}")
    e(f"v_add_u32 v{VT+7}, v{VT+7}, v{VT+8}"); e(f"v_add_u32 v{AGB}, {T_G}, v{VT+7}")
    for i in range(72): e(f"v_mov_b32 v{i}, 0")
    e(f"v_lshlrev_b32 v{VT+7}, 4, v{VT}"); e(f"v_add_u32 v{VT+7}, {T_DIAG}, v{VT+7}")
    e(f"v_add_u32 v{VT+8}, {T_G}, v{VT+2}")
    e(f"ds_write_b64 v{VT+8}, v[0:1] offset:4096")
    e("s_waitcnt vmcnt(0)")
    for h in range(2):
        for q in range(4): e(f"v_and_b32 v{XA+4*h+q}, v{XA+4*h+q}, v{VT+4+(q&1)}")
        e(f"ds_write_b128 v{VT+7}, v[{XA+4*h}:{XA+4*h+3}] offset:{h*4096}")
    e(f"ds_write_b64 v{VT+8}, v[{XA+8}:{XA+9}]"); e(f"ds_write_b64 v{VT+8}, v[{XA+10}:{XA+11}] offset:2048")
    e("s_waitcnt lgkmcnt(0)")
    e("s_barrier")
    if stamps: e("s_memrealtime s[52:53]")
    def rd_w(ks):
        t, s = ks // 2, ks % 2; slot = t % NS; hi = slot >= 2; b = (slot - (2 if hi else 0)) * STG
        aw = AWH if hi else AW
        o = []
        for nb in range(2):
            for q in range(2):
                o.append(f"ds_read_b64_tr_b16 v[{WR+4*nb+2*q}:{WR+4*nb+2*q+1}], v{aw+nb} offset:{b + s*8192 + q*1024}")
        o.append(f"ds_read_b128 v[{DG}:{DG+3}], v{ADG} offset:{ks*256}")
        o.append(f"ds_read_b128 v[{GB}:{GB+3}], v{AGB} offset:{ks*64}")
        return o
    def rd_x(ks):
        t, s = ks // 2, ks % 2; slot = t % NS; hi = slot >= 2; b = (slot - (2 if hi else 0)) * STG
        X = XA if ks % 2 == 0 else XB
        ax = AXH if hi else AX
        return [f"ds_read_b128 v[{X+4*mb}:{X+4*mb+3}], v{ax+s} offset:{b + mb*2048}" for mb in range(8)]
    def m4():
        return [f"v_mfma_f32_4x4x4_16b_bf16 v[{TT+4*p}:{TT+4*p+3}], v[{DG+2*(p&1)}:{DG+2*(p&1)+1}], v[{WR+2*p}:{WR+2*p+1}], 0" for p in range(4)]
    def cvts(ks):
        WP = WPA if ks % 2 == 0 else WPB
        o = []
        for p in range(4):
            o.append(f"v_cvt_pk_bf16_f32 v{WP+2*p}, v{TT+4*p}, v{TT+4*p+1}")
            o.append(f"v_cvt_pk_bf16_f32 v{WP+2*p+1}, v{TT+4*p+2}, v{TT+4*p+3}")
        return o
    def cdm():
        return [f"v_mfma_f32_16x16x32_bf16 v[{CD+4*nb}:{CD+4*nb+3}], v[{WR+4*nb}:{WR+4*nb+3}], v[{GB}:{GB+3}], v[{CD+4*nb}:{CD+4*nb+3}]" for nb in range(2)]
    def mains(ks):
        WP = WPA if ks % 2 == 0 else WPB
        X = XA if ks % 2 == 0 else XB
        o = []
        for nb in range(2):
            for mb in (range(8) if nb == 0 else range(7, -1, -1)):
                a = ACC + (mb * 2 + nb) * 4
                o.append(f"v_mfma_f32_16x16x32_bf16 v[{a}:{a+3}], v[{WP+4*nb}:{WP+4*nb+3}], v[{X+4*mb}:{X+4*mb+3}], v[{a}:{a+3}]")
        return o
    for r in rd_w(0) + rd_x(0): e(r)
    e("s_waitcnt lgkmcnt(8)")
    for m in m4(): e(m)
    for m in cdm(): e(m)
    e("s_nop 4")
    for c in cvts(0): e(c)
    for r in rd_w(1): e(r)
    e("s_waitcnt lgkmcnt(6)")
    NK = 2 * NT
    for ks in range(NK):
        if stamps and ks % 4 == 0 and (inloop or ks == 0):
            e(f"s_memrealtime s[{60+4*(ks//4)}:{61+4*(ks//4)}]"); e(f"s_memtime s[{62+4*(ks//4)}:{63+4*(ks//4)}]")
        n1 = ks + 1 < NK
        n2 = ks + 2 < NK
        rx = rd_x(ks + 1) if n1 else []
        rw = rd_w(ks + 2) if n2 else []
        if not do_tab: rw = rw[:4]
        mm = mains(ks)
        m4s = m4() if n1 and do_scale else []
        cv = cvts(ks + 1) if n1 and do_scale and do_cvt else []
        cd = cdm() if n1 and do_cd else []
        for g in range(16):
            if g == 8 and n2 and ks % 2 == 0 and do_bar: e("s_barrier")
            e(mm[g])
            if g < 8 and rx: e(rx[g])
            if 8 <= g < 8 + len(rw): e(rw[g-8])
            if g == M4GAP and n1:
                e(f"s_waitcnt lgkmcnt({M4GAP+1})")
                for m in m4s: e(m)
            if g == M4GAP + 1:
                for c in cd: e(c)
            if cv and M4GAP + 2 <= g < M4GAP + 10: e(cv[g - M4GAP - 2])
        if n1: e(f"s_waitcnt lgkmcnt({len(rw)})")
    if stamps: e("s_memrealtime s[92:93]"); e("s_memtime s[94:95]"); e("s_memrealtime s[54:55]")
    e("s_barrier")
    e(f"v_and_b32 v{VT}, 15, v{LN}"); e(f"v_lshlrev_b32 v{VT+1}, 3, v{VT}"); e(f"v_add_u32 v{VT+1}, {T_ST}, v{VT+1}")
    RQ = XA
    for mb in range(8): e(f"ds_read_b64 v[{RQ+2*mb}:{RQ+2*mb+1}], v{VT+1} offset:{mb*128}")
    e("s_lshl_b32 s24, s21, 7"); e(f"v_add_u32 v{VT+2}, s24, v{VT}"); e(f"v_lshlrev_b32 v{VT+2}, 11, v{VT+2}")
    e(f"v_lshrrev_b32 v{VT+3}, 4, v{LN}"); e(f"v_and_b32 v{VT+4}, 1, v{VT+3}"); e(f"v_lshlrev_b32 v{VT+4}, 5, v{VT+4}")
    e(f"v_lshrrev_b32 v{VT+3}, 1, v{VT+3}"); e(f"v_lshlrev_b32 v{VT+3}, 4, v{VT+3}"); e(f"v_add_u32 v{VT+4}, v{VT+4}, v{VT+3}")
    e("s_lshl_b32 s24, s22, 8"); e("s_lshl_b32 s25, s20, 6"); e("s_add_u32 s24, s24, s25")
    e(f"v_add_u32 v{VT+2}, v{VT+2}, v{VT+4}"); e(f"v_add_u32 v{VT+2}, s24, v{VT+2}")
    e("s_mov_b32 s28, s36"); e("s_and_b32 s29, s37, 0xffff"); e("s_mov_b32 s30, 0x800000"); e("s_mov_b32 s31, 0x20000")
    CB, DBR = XB, XB + 8
    e("s_nop 7")
    for nb in range(2):
        for r in range(4):
            e(f"v_mov_b32_dpp v{CB+4*nb+r}, v{CD+4*nb+r} row_newbcast:0 row_mask:0xf bank_mask:0xf")
            e(f"v_mov_b32_dpp v{DBR+4*nb+r}, v{CD+4*nb+r} row_newbcast:1 row_mask:0xf bank_mask:0xf")
    e("s_waitcnt lgkmcnt(0)")
    EE = WR
    for mb in range(8):
        R = RQ + 2 * mb
        for nb in range(2):
            for h in range(2):
                a = ACC + (mb * 2 + nb) * 4 + 2 * h
                t = EE + 4 * nb + 2 * h
                e(f"v_pk_fma_f32 v[{t}:{t+1}], v[{CB+4*nb+2*h}:{CB+4*nb+2*h+1}], v[{R}:{R+1}], v[{DBR+4*nb+2*h}:{DBR+4*nb+2*h+1}] op_sel:[0,1,0] op_sel_hi:[1,1,1]")
                e(f"v_pk_fma_f32 v[{a}:{a+1}], v[{a}:{a+1}], v[{R}:{R+1}], v[{t}:{t+1}] op_sel:[0,0,0] op_sel_hi:[1,0,1]")
        o = TT + 4 * (mb % 4)
        a0 = ACC + (mb * 2) * 4; a1 = a0 + 4
        e(f"v_cvt_pk_bf16_f32 v{o}, v{a0}, v{a0+1}"); e(f"v_cvt_pk_bf16_f32 v{o+1}, v{a0+2}, v{a0+3}")
        e(f"v_cvt_pk_bf16_f32 v{o+2}, v{a1}, v{a1+1}"); e(f"v_cvt_pk_bf16_f32 v{o+3}, v{a1+2}, v{a1+3}")
        e("s_nop 1")
        e(f"v_permlane16_swap_b32 v{o}, v{o+2}"); e(f"v_permlane16_swap_b32 v{o+1}, v{o+3}")
        e(f"s_mov_b32 s38, {mb*16*2048}")
        e(f"buffer_store_dwordx4 v[{o}:{o+3}], v{VT+2}, s[28:31], s38 offen {staux}")
    if stamps:
        e("s_memrealtime s[56:57]"); e("s_waitcnt vmcnt(0)")
        e("s_memrealtime s[42:43]"); e("s_memtime s[48:49]"); e("s_waitcnt lgkmcnt(0)")
        e("s_cmp_lg_u32 s20, 0"); e("s_cbranch_scc1 G_done")
        e("s_lshl_b32 s24, s2, 8"); e("s_add_u32 s44, s44, s24"); e("s_addc_u32 s45, s45, 0")
        e("s_sub_u32 s48, s48, s46"); e("s_subb_u32 s49, s49, s47")
        e("s_mov_b64 exec, 1"); e("v_mov_b32 v8, 0")
        for i, r in enumerate([40, 42, 52, 52, 54, 48, 56, 46] + [60 + 2*q for q in range(18)]):
            e(f"v_mov_b32 v4, s{r}"); e(f"v_mov_b32 v5, s{r+1}")
            e(f"global_store_dwordx2 v8, v[4:5], s[44:45] offset:{8*i}"); e("s_waitcnt vmcnt(0)")
    e.lab("G_done"); e("s_endpgm")
    kd(e, KN, 208, 100)
    return e.text()

if __name__ == "__main__":
    open("v2.s", "w").write(gen())
    open("v2_st.s", "w").write(gen(stamps=True))
    bare = dict(do_dma=False, do_stats=False, do_cd=False, do_scale=False, inloop=False)
    for n, kw in {"bare": bare, "bare_nobar": dict(bare, do_bar=False), "full_noin": dict(inloop=False),
                  "nostats": dict(inloop=False, do_stats=False), "nostats_nocd": dict(inloop=False, do_stats=False, do_cd=False),
                  "nodma": dict(inloop=False, do_dma=False), "gap2": dict(inloop=False, M4GAP=2), "gap5": dict(inloop=False, M4GAP=5),
                  "prio3": dict(inloop=False, prio=3)}.items():
        open(f"v2_{n}.s", "w").write(gen(stamps=True, **kw))
```

```python
import sys
sys.path.insert(0, "tools")
from gemm_lib import *

STG = 32768
NS = 4
T_G = NS * STG
T_B = T_G + 4096 + 64
T_Z = T_B + 1024 + 64
T_ST = T_Z + 512 + 128
T_CD = T_ST + 1024
T_CF = T_CD + 1024
LDS_BYTES = T_CF + 1024
NT = 16
WS_STATS = 0x100000
WS_CD = 0x120000
NCD = 8

DEF_PRO = [("S", 0), ("D", 0), ("D", 1), ("S", 1)]
DEF_POST = [("S", 2)]
DEF_AT = {0: [("D", 2)], 1: [("D", 3)], 2: [("D", 4)], 3: [("D", 5)], 4: [("D", 6)], 5: [("D", 7)]}

def gen(stamps=False, xaux="nt", waux="", staux="sc0 sc1", prio=1, lprio=0, do_cd=True, do_scale=True, do_bar=True, inloop=False,
        M4GAP=4, caux="nt", tstat=14, budget=11, pst=False, pro=None, post=None, at=None, tget=12, tnonce=3, land=False, pk=False, maskspread=True, epi_drop='', tcdpub=5, rot=True, codepf=True, pfslices=8):
    pro = DEF_PRO if pro is None else pro
    post = DEF_POST if post is None else post
    at = DEF_AT if at is None else at
    e = E()
    e.raw(f"; @launch grid=(256,1,1) block=(512,1,1) lds={LDS_BYTES}")
    e.raw('.amdgcn_target "amdgcn-amd-amdhsa--gfx950"'); e.raw(".text")
    head(e, KN)
    e("s_cmp_ge_u32 s2, 256"); e("s_cbranch_scc1 G_done")
    if stamps: e("s_memrealtime s[40:41]"); e("s_memtime s[46:47]")
    e("s_load_dwordx4 s[4:7], s[0:1], 0")
    e("s_load_dwordx4 s[16:19], s[0:1], 16")
    e("s_load_dwordx4 s[36:39], s[0:1], 32")
    e("s_load_dwordx2 s[44:45], s[0:1], 48")
    e("v_lshrrev_b32 v1, 6, v0"); e("v_and_b32 v2, 63, v0")
    e("s_and_b32 s23, s2, 7"); e("s_lshr_b32 s49, s2, 3")
    e("v_readfirstlane_b32 s20, v1")
    e("s_lshl_b32 s21, s23, 2"); e("s_and_b32 s25, s49, 3"); e("s_add_u32 s21, s21, s25")
    e("s_lshr_b32 s22, s49, 2")
    e("s_lshl_b32 s51, s25, 9")
    e("s_cmp_ge_u32 s20, 4"); e("s_cbranch_scc1 L_consumer")
    DA, DB = 8, 12
    if lprio: e(f"s_setprio {lprio}")
    e("v_lshrrev_b32 v3, 3, v2"); e("v_and_b32 v4, 7, v2"); e("v_lshrrev_b32 v5, 4, v2")
    e("s_lshl_b32 s24, s20, 5"); e("v_add_u32 v3, s24, v3"); e("v_lshlrev_b32 v3, 11, v3")
    for i in range(2):
        e(f"v_add_u32 v6, {4*i}, v5"); e("v_xor_b32 v6, v6, v4"); e("v_lshlrev_b32 v6, 4, v6"); e(f"v_add_u32 v{DA+i}, v6, v3")
        if i: e(f"v_add_u32 v{DA+i}, {8*2048}, v{DA+i}")
    e(f"v_add_u32 v{DA+2}, {16*2048}, v{DA}"); e(f"v_add_u32 v{DA+3}, {16*2048}, v{DA+1}")
    e("s_lshl_b32 s24, s20, 4"); e("v_add_u32 v3, s24, v5"); e("v_lshlrev_b32 v3, 11, v3"); e("v_and_b32 v4, 15, v2")
    for h in range(2):
        e(f"v_add_u32 v6, {4*h}, v5"); e("v_lshlrev_b32 v6, 1, v6"); e("v_xor_b32 v6, v6, v4"); e("v_lshlrev_b32 v6, 4, v6")
        e(f"v_add_u32 v{DB+2*h}, v6, v3")
        if h: e(f"v_add_u32 v{DB+2}, {8*2048}, v{DB+2}")
        e(f"v_add_u32 v{DB+2*h+1}, {4*2048}, v{DB+2*h}")
    e("s_lshl_b32 s32, s21, 18"); e("s_lshl_b32 s33, s22, 8"); e("s_lshl_b32 s34, s20, 12")
    e("s_waitcnt lgkmcnt(0)")
    if pst: e("s_memrealtime s[70:71]")
    e("s_mov_b32 s8, s4"); e("s_and_b32 s9, s5, 0xffff"); e("s_mov_b32 s10, 0x800000"); e("s_mov_b32 s11, 0x20000")
    e("s_mov_b32 s12, s18"); e("s_and_b32 s13, s19, 0xffff"); e("s_mov_b32 s14, 0x200000"); e("s_mov_b32 s15, 0x20000")
    ops = []
    def op(tag, ins): e(ins); ops.append(tag)
    def wait_for(tag):
        last = max(i for i, t in enumerate(ops) if t == tag)
        e(f"s_waitcnt vmcnt({len(ops) - 1 - last})")
    ORD = (0, 4, 1, 5, 2, 6, 3, 7)
    def dma(t):
        slot = t % NS
        e(f"s_add_u32 s56, s51, {t*128}"); e("s_and_b32 s56, s56, 0x7ff"); e("s_lshl_b32 s57, s56, 10")
        e("s_add_u32 s56, s56, s32"); e("s_add_u32 s57, s57, s33")
        for idx in ORD:
            if idx < 4:
                e(f"s_add_u32 m0, s34, {slot*STG + idx*1024}"); e("s_nop 0")
                op(f"S{t}", f"buffer_load_dwordx4 v{DA+idx}, s[8:11], s56 offen {xaux} lds")
            else:
                e(f"s_add_u32 m0, s34, {slot*STG + 16384 + (idx-4)*1024}"); e("s_nop 0")
                op(f"S{t}", f"buffer_load_dwordx4 v{DB+idx-4}, s[12:15], s57 offen {waux} lds")
    CH = 20
    setup = set()
    def need(what):
        if what in setup: return
        setup.add(what)
        if what == "D":
            e("v_lshlrev_b32 v16, 11, v5"); e("v_lshlrev_b32 v3, 4, v4"); e("v_add_u32 v16, v16, v3")
            e("s_lshl_b32 s35, s21, 7"); e("s_lshl_b32 s24, s22, 4"); e("s_add_u32 s35, s35, s24"); e("s_lshl_b32 s24, s20, 2"); e("s_add_u32 s35, s35, s24")
            e("s_mov_b32 s48, s35"); e("s_lshl_b32 s35, s35, 11")
        elif what == "WT":
            e("s_lshl_b32 s24, s2, 2"); e("s_add_u32 s24, s24, s20"); e("s_lshl_b32 s24, s24, 4")
            e("v_add_u32 v7, s24, v4"); e("v_lshlrev_b32 v7, 7, v7")
        elif what == "WX":
            e("v_lshrrev_b32 v18, 3, v2"); e("v_lshlrev_b32 v18, 17, v18"); e("v_and_b32 v3, 7, v2"); e("v_lshlrev_b32 v3, 7, v3"); e("v_add_u32 v18, v18, v3")
            e("s_lshl_b32 s50, s49, 1"); e("s_lshr_b32 s24, s20, 1"); e("s_add_u32 s50, s50, s24"); e("s_lshl_b32 s50, s50, 11")
            e("s_and_b32 s24, s20, 1"); e("s_lshl_b32 s24, s24, 10"); e("s_add_u32 s50, s50, s24")
    def item(it):
        k = it[0]
        if k == "S": dma(it[1])
        elif k == "D":
            need("D"); j = it[1]
            e(f"s_add_u32 s26, s51, {j*256}"); e("s_and_b32 s26, s26, 0x7ff"); e("s_add_u32 s26, s26, s35")
            op(f"D{j}", f"buffer_load_dwordx4 v[{CH+4*j}:{CH+4*j+3}], v16, s[8:11], s26 offen {caux}")
        elif k == "WT":
            need("WT"); op("WT", "buffer_load_dword v17, v7, s[12:15], 0 offen")
        elif k == "WX":
            need("WX"); a, n = it[1], it[2]
            e(f"s_add_u32 s26, s50, {a*64*2048}")
            if n < 8:
                e(f"s_mov_b32 exec_lo, {hex(((1 << (8*n)) - 1) & 0xffffffff)}"); e(f"s_mov_b32 exec_hi, {hex(((1 << (8*n)) - 1) >> 32)}")
            op("WX", "buffer_load_dword v17, v18, s[12:15], s26 offen")
            if n < 8: e("s_mov_b64 exec, -1")
    e("v_lshlrev_b32 v19, 4, v2")
    e("s_cmp_lt_u32 s20, 2"); e("s_cselect_b32 s52, s6, s16"); e("s_cselect_b32 s53, s7, s17")
    e("s_cselect_b32 s26, 0, s51"); e("s_cselect_b32 s58, 1024, s51")
    e("s_lshl_b32 s24, s20, 11"); e(f"s_add_u32 s24, s24, {T_G}"); e(f"s_cselect_b32 s24, s24, s24")
    e("s_cmp_lt_u32 s20, 2"); e(f"s_cselect_b32 s24, s24, {T_B}"); e("s_add_u32 s59, s24, 1024"); e("s_cmp_lt_u32 s20, 2"); e(f"s_cselect_b32 s59, s59, {T_B}")
    e("s_and_b32 s53, s53, 0xffff"); e("s_mov_b32 s54, 2048"); e("s_mov_b32 s55, 0x20000")
    e("s_mov_b32 m0, s24"); e("s_nop 0")
    op("GB", "buffer_load_dwordx4 v19, s[52:55], s26 offen lds")
    e("s_mov_b32 m0, s59"); e("s_nop 0")
    op("GB", "buffer_load_dwordx4 v19, s[52:55], s58 offen lds")
    for it in pro: item(it)
    if pst: e("s_memrealtime s[76:77]")
    e("v_mov_b32 v52, 0"); e("v_mov_b32 v53, 0")
    e("s_mov_b32 s27, 0x3f803f80")
    wait_for("S0")
    if land: e("s_memrealtime s[60:61]")
    if pst: e("s_memrealtime s[78:79]")
    e("s_barrier")
    for it in post: item(it)
    order_issue = {}
    def chunk_ready(j):
        seq = list(pro) + list(post)
        if ("D", j) in seq:
            i = seq.index(("D", j))
            later = [x[1] for x in seq[i:] if x[0] == "S"]
            if later: return max(0, later[0] - 1)
            return 2
        for t, its in at.items():
            if ("D", j) in its: return t + 2
        raise ValueError(j)
    side = []
    def V(t, ins): side.append((t, ins))
    for j in sorted(range(8), key=chunk_ready):
        for q in range(4):
            V(chunk_ready(j), f"v_dot2c_f32_bf16 v52, s27, v{CH+4*j+q}")
            V(chunk_ready(j), f"v_dot2c_f32_bf16 v53, v{CH+4*j+q}, v{CH+4*j+q}")
    nacc = len(side)
    for sh in ("quad_perm:[1,0,3,2]", "quad_perm:[2,3,0,1]", "row_half_mirror", "row_mirror"):
        V(0, f"v_add_f32_dpp v52, v52, v52 {sh} row_mask:0xf bank_mask:0xf"); V(0, f"v_add_f32_dpp v53, v53, v53 {sh} row_mask:0xf bank_mask:0xf"); V(0, "s_nop 0")
    V(0, "v_mul_f32 v52, 0x3a800000, v52"); V(0, "v_mul_f32 v53, 0x3a800000, v53")
    V(0, "v_add_u32 v3, s48, v5"); V(0, "v_fma_f32 v53, -v52, v52, v53"); V(0, "v_max_f32 v53, 0, v53"); V(0, "v_add_f32 v53, 0x3727c5ac, v53")
    V(0, "v_rsq_f32 v56, v53"); V(0, "v_lshlrev_b32 v3, 4, v3"); V(0, f"v_add_u32 v3, {WS_STATS}, v3")
    V(0, "v_mul_f32 v58, v52, v56"); V(0, "v_sub_f32 v58, 0, v58")
    nonce_state = {"done": False}
    def get_nonce():
        e("s_waitcnt lgkmcnt(0)")
        if nonce_state["done"]: return
        nonce_state["done"] = True
        e("s_cmp_lg_u32 s28, 0"); e("s_cbranch_scc1 L_have_nonce")
        e("s_mov_b32 s29, 0"); e("v_mov_b32 v4, 0")
        e.lab("L_nonce_poll")
        e("global_load_dword v6, v4, s[38:39] sc0 sc1"); e("s_waitcnt vmcnt(0)"); e("s_nop 0")
        e("v_readfirstlane_b32 s28, v6"); e("s_add_u32 s29, s29, 1")
        e("s_cmp_lg_u32 s28, 0"); e("s_cbranch_scc1 L_have_nonce")
        e("s_cmp_lt_u32 s29, 100000"); e("s_cbranch_scc1 L_nonce_poll")
        e.lab("L_have_nonce")
    def publish():
        get_nonce()
        e("s_mov_b32 s30, 0x00010001"); e("s_mov_b32 s31, 0x00010001"); e("s_mov_b64 exec, s[30:31]")
        e("v_mov_b32 v57, s28"); e("v_mov_b32 v59, s28")
        op("PUB", "global_store_dwordx4 v3, v[56:59], s[44:45] sc0 sc1")
        e("s_mov_b64 exec, -1")
    state = {"pos": 0, "pub": None}
    def run_side(t):
        n = 0
        while state["pos"] < len(side) and n < budget and side[state["pos"]][0] <= t:
            if state["pos"] == nacc and n > 0: break
            e(side[state["pos"]][1]); state["pos"] += 1
            if not side[state["pos"]-1][1].startswith("s_"): n += 1
        if t == tnonce: e("s_load_dword s28, s[38:39], 0")
        if state["pos"] == len(side) and state["pub"] is None and (n <= 4):
            publish(); state["pub"] = t
    def emit_collect():
        e("s_mov_b32 s29, 0")
        e.lab("L_stat_check")
        e("s_waitcnt vmcnt(0)")
        e("v_cmp_eq_u32 s[30:31], s28, v65"); e("v_cmp_eq_u32 vcc, s28, v67"); e("s_add_u32 s29, s29, 1"); e("s_nop 1")
        e("s_and_b64 s[30:31], vcc, s[30:31]")
        for p_ in range(4):
            e(f"v_cmp_eq_u32 vcc, s28, v{79+2*p_}"); e("s_nop 3"); e("s_and_b64 s[30:31], vcc, s[30:31]")
        e("s_cmp_eq_u64 s[30:31], exec"); e("s_cbranch_scc1 L_stat_ok")
        e("s_cmp_ge_u32 s29, 100000"); e("s_cbranch_scc1 L_stat_ok")
        e("s_sleep 2")
        e("global_load_dwordx4 v[64:67], v68, s[44:45] sc0 sc1")
        e("v_subrev_u32 v77, 6144, v76")
        for p_ in range(4):
            e(f"global_load_dwordx2 v[{78+2*p_}:{79+2*p_}], v77, s[44:45] sc0 sc1")
            if p_ < 3: e("v_add_u32 v77, 2048, v77")
        e("s_branch L_stat_check")
        e.lab("L_stat_ok")
        e("v_mov_b32 v65, v66"); e("v_add_f32 v78, v78, v80"); e("v_add_f32 v82, v82, v84")
        e("ds_write_b64 v69, v[64:65]"); e("v_add_f32 v78, v78, v82")
        e(f"v_add_u32 v71, {T_CF - T_CD}, v71"); e("ds_write_b32 v71, v78")
        if stamps: e("s_memrealtime s[58:59]")
        e("s_waitcnt lgkmcnt(0)")
    for t in range(NT - 1):
        wait_for(f"S{t+1}")
        if land: e(f"s_memrealtime s[{62+2*t}:{63+2*t}]")
        if do_bar: e("s_barrier")
        for it in at.get(t, []): item(it)
        if t + 3 < NT: dma(t + 3)
        if t == tcdpub:
            e("v_and_b32 v3, 31, v2"); e("s_lshl_b32 s25, s20, 5"); e("v_add_u32 v3, s25, v3"); e("v_lshrrev_b32 v4, 5, v2")
            e("v_lshlrev_b32 v4, 7, v4"); e("v_add_u32 v70, v3, v4")
            e("v_lshlrev_b32 v3, 2, v70"); e(f"v_add_u32 v71, {T_CD}, v3"); e("ds_read_b32 v72, v71")
            e("s_lshl_b32 s24, s22, 5"); e("s_add_u32 s24, s24, s21"); e("s_lshl_b32 s24, s24, 11")
            e("v_lshlrev_b32 v74, 3, v70"); e(f"v_add_u32 v74, {WS_CD}, v74"); e("v_add_u32 v75, s24, v74")
            get_nonce()
            e("v_mov_b32 v73, s28")
            op("PUBCD", "global_store_dwordx2 v75, v[72:73], s[44:45] sc0 sc1")
        if t == tget:
            e("s_and_b32 s24, s21, 28"); e("s_lshl_b32 s25, s22, 5"); e("s_add_u32 s24, s24, s25"); e("s_lshl_b32 s24, s24, 11")
            e("v_add_u32 v76, s24, v74")
            for p_ in range(4):
                if p_: e("v_add_u32 v76, 2048, v76")
                op("GETCD", f"global_load_dwordx2 v[{78+2*p_}:{79+2*p_}], v76, s[44:45] sc0 sc1")
            e("v_and_b32 v3, 31, v2"); e("s_lshl_b32 s24, s21, 7"); e("s_lshl_b32 s25, s20, 5"); e("s_add_u32 s24, s24, s25")
            e("v_add_u32 v68, s24, v3"); e("v_lshlrev_b32 v68, 4, v68"); e(f"v_add_u32 v68, {WS_STATS}, v68")
            e("v_add_u32 v69, s25, v3"); e("v_lshlrev_b32 v69, 3, v69"); e(f"v_add_u32 v69, {T_ST}, v69")
            op("GET", "global_load_dwordx4 v[64:67], v68, s[44:45] sc0 sc1")
        run_side(t)
        if t == tstat: emit_collect()
    assert state["pub"] is not None and state["pub"] < tget, state
    gen.pub = state["pub"]
    e("s_barrier")
    if stamps:
        e("s_cmp_lg_u32 s20, 0"); e("s_cbranch_scc1 G_done")
        e("s_lshl_b32 s24, s2, 8"); e("s_add_u32 s44, s44, s24"); e("s_addc_u32 s45, s45, 0")
        e("s_mov_b64 exec, 1"); e("v_mov_b32 v8, 0")
        e("v_mov_b32 v4, s58"); e("v_mov_b32 v5, s59"); e(f"global_store_dwordx2 v8, v[4:5], s[44:45] offset:{8*27}")
        e("v_mov_b32 v4, s29"); e("v_mov_b32 v5, 0"); e(f"global_store_dwordx2 v8, v[4:5], s[44:45] offset:{8*28}")
        if land:
            e("s_waitcnt lgkmcnt(0)")
            e("s_add_u32 s44, s44, 0x20000"); e("s_addc_u32 s45, s45, 0")
            for i in range(16):
                e(f"v_mov_b32 v4, s{60+2*i}"); e(f"v_mov_b32 v5, s{61+2*i}")
                e(f"global_store_dwordx2 v8, v[4:5], s[44:45] offset:{8*i}"); e("s_waitcnt vmcnt(0)")
        if pst:
            e("s_waitcnt lgkmcnt(0)")
            e("s_add_u32 s44, s44, 0x20000"); e("s_addc_u32 s45, s45, 0")
            for i, r in enumerate((40, 70, 76, 78)):
                e(f"v_mov_b32 v4, s{r}"); e(f"v_mov_b32 v5, s{r+1}")
                e(f"global_store_dwordx2 v8, v[4:5], s[44:45] offset:{8*i}"); e("s_waitcnt vmcnt(0)")
    e("s_endpgm")
    e.lab("L_consumer")
    ACC, CD, XA, XB, WR, DG, GB, TT, WPA, WPB = 0, 64, 72, 104, 136, 144, 148, 152, 168, 176
    AX, AXH, AW, AWH, ADG, AGB = 184, 186, 188, 190, 192, 193
    VT = 194
    LN = VT + 10
    CB, DBR, RQ, EE = 208, 216, 224, 240
    AST, AOUT = 248, 249
    e("s_sub_u32 s20, s20, 4")
    if codepf:
        e("s_getpc_b64 s[60:61]")
        e.lab("L_pc")
        e(f"s_sub_u32 s60, s60, L_pc - {KN}"); e("s_subb_u32 s61, s61, 0")
        e(f"s_and_b32 s62, s49, {pfslices-1}"); e("s_lshl_b32 s62, s62, 2"); e("s_add_u32 s62, s62, s20")
        e(f"s_mul_i32 s62, s62, ((L_end - {KN} + 127) / 128 + {4*pfslices-1}) / {4*pfslices}")
        e(f"v_min_u32 v3, ((L_end - {KN} + 127) / 128 + {4*pfslices-1}) / {4*pfslices} - 1, v2")
        e("v_add_u32 v3, s62, v3"); e(f"v_min_u32 v3, (L_end - {KN} - 4) / 128, v3"); e("v_lshlrev_b32 v3, 7, v3")
        e("global_load_dword v255, v3, s[60:61]")
    if prio: e(f"s_setprio {prio}")
    e(f"v_mov_b32 v{LN}, v2")
    e("s_lshl_b32 s24, s20, 6"); e(f"v_add_u32 v{VT}, s24, v{LN}")
    e(f"v_lshlrev_b32 v{VT+2}, 3, v{VT}")
    e("s_waitcnt lgkmcnt(0)")
    e("s_or_b32 s24, s2, s20"); e("s_cmp_lg_u32 s24, 0"); e("s_cbranch_scc1 L_no_nonce")
    e("s_memrealtime s[28:29]"); e("s_waitcnt lgkmcnt(0)"); e("s_or_b32 s28, s28, 1")
    e(f"v_mov_b32 v{VT+3}, s28"); e(f"v_mov_b32 v{VT+4}, 0")
    e("s_mov_b64 exec, 1"); e(f"global_store_dword v{VT+4}, v{VT+3}, s[38:39] sc0 sc1"); e("s_mov_b64 exec, -1")
    e.lab("L_no_nonce")
    e(f"v_and_b32 v{VT+3}, 3, v{LN}")
    MK0, MK1 = 250, 251
    e(f"v_mov_b32 v{MK0}, 0"); e(f"v_mov_b32 v{MK1}, 0")
    e(f"v_mov_b32 v{VT+6}, 0xffff"); e(f"v_mov_b32 v{VT+7}, 0xffff0000")
    for i, (dst, src) in enumerate(((MK0, 6), (MK0, 7), (MK1, 6), (MK1, 7))):
        e(f"v_cmp_eq_u32 vcc, {i}, v{VT+3}"); e("s_nop 1"); e(f"v_cndmask_b32 v{dst}, v{dst}, v{VT+src}, vcc")
    e(f"v_and_b32 v{VT+3}, 15, v{LN}"); e(f"v_lshrrev_b32 v{VT+6}, 4, v{LN}")
    e(f"v_lshrrev_b32 v{VT+7}, 1, v{VT+3}"); e(f"v_lshlrev_b32 v{VT+8}, 7, v{VT+3}")
    for s in range(2):
        e(f"v_add_u32 v{VT+9}, {4*s}, v{VT+6}"); e(f"v_xor_b32 v{VT+9}, v{VT+9}, v{VT+7}"); e(f"v_lshlrev_b32 v{VT+9}, 4, v{VT+9}")
        e(f"v_add_u32 v{AX+s}, v{VT+8}, v{VT+9}"); e(f"v_add_u32 v{AXH+s}, 0x10000, v{AX+s}")
    e(f"v_lshrrev_b32 v{VT+7}, 2, v{VT+3}")
    e(f"v_and_b32 v{VT+8}, 1, v{VT+6}"); e(f"v_lshlrev_b32 v{VT+8}, 2, v{VT+8}"); e(f"v_or_b32 v{VT+8}, v{VT+8}, v{VT+7}")
    e(f"v_lshlrev_b32 v{VT+9}, 3, v{VT+6}"); e(f"v_add_u32 v{VT+9}, v{VT+9}, v{VT+7}"); e(f"v_lshlrev_b32 v{VT+9}, 8, v{VT+9}")
    e(f"v_and_b32 v{VT+7}, 3, v{LN}"); e(f"v_lshlrev_b32 v{VT+7}, 3, v{VT+7}"); e(f"v_add_u32 v{VT+9}, v{VT+9}, v{VT+7}")
    e(f"v_add_u32 v{VT+9}, 16384, v{VT+9}"); e("s_lshl_b32 s24, s20, 1")
    for nb in range(2):
        e(f"s_add_u32 s25, s24, {nb}"); e(f"v_xor_b32 v{VT+7}, s25, v{VT+8}"); e(f"v_lshlrev_b32 v{VT+7}, 5, v{VT+7}")
        e(f"v_add_u32 v{AW+nb}, v{VT+9}, v{VT+7}"); e(f"v_add_u32 v{AWH+nb}, 0x10000, v{AW+nb}")
    e(f"v_lshlrev_b32 v{VT+7}, 4, v{VT+6}"); e(f"v_add_u32 v{ADG}, {T_G}, v{VT+7}"); e(f"v_add_u32 v{ADG}, s51, v{ADG}")
    e(f"v_lshlrev_b32 v{VT+8}, 4, v{VT+6}")
    e(f"v_mov_b32 v{AGB}, {T_Z}"); e(f"v_mov_b32 v{VT+7}, {T_B}")
    e(f"v_cmp_eq_u32 vcc, 1, v{VT+3}"); e("s_nop 1"); e(f"v_cndmask_b32 v{AGB}, v{AGB}, v{VT+7}, vcc")
    e(f"s_add_u32 s24, s51, {T_G}"); e(f"v_mov_b32 v{VT+7}, s24")
    e(f"v_cmp_eq_u32 vcc, 0, v{VT+3}"); e("s_nop 1"); e(f"v_cndmask_b32 v{AGB}, v{AGB}, v{VT+7}, vcc")
    e(f"v_add_u32 v{AGB}, v{AGB}, v{VT+8}")
    ACDW, ACDR = 252, 253
    e(f"v_lshlrev_b32 v{VT+7}, 4, v{VT+6}"); e("s_lshl_b32 s24, s20, 7"); e(f"v_add_u32 v{VT+7}, s24, v{VT+7}")
    e(f"v_add_u32 v{ACDR}, {T_CF}, v{VT+7}")
    e(f"v_lshlrev_b32 v{VT+8}, 9, v{VT+3}"); e(f"v_add_u32 v{VT+7}, v{VT+7}, v{VT+8}"); e(f"v_add_u32 v{ACDW}, {T_CD}, v{VT+7}")
    e("v_mov_b32 v0, 0"); e("v_mov_b32 v1, 0")
    e(f"v_lshlrev_b32 v{AST}, 3, v{VT+3}"); e(f"v_add_u32 v{AST}, {T_ST}, v{AST}")
    e("s_lshl_b32 s24, s21, 7"); e(f"v_add_u32 v{AOUT}, s24, v{VT+3}"); e(f"v_lshlrev_b32 v{AOUT}, 11, v{AOUT}")
    e(f"v_and_b32 v{VT+7}, 1, v{VT+6}"); e(f"v_lshlrev_b32 v{VT+7}, 5, v{VT+7}")
    e(f"v_lshrrev_b32 v{VT+8}, 1, v{VT+6}"); e(f"v_lshlrev_b32 v{VT+8}, 4, v{VT+8}"); e(f"v_add_u32 v{VT+7}, v{VT+7}, v{VT+8}")
    e("s_lshl_b32 s24, s22, 8"); e("s_lshl_b32 s25, s20, 6"); e("s_add_u32 s24, s24, s25")
    e(f"v_add_u32 v{AOUT}, v{AOUT}, v{VT+7}"); e(f"v_add_u32 v{AOUT}, s24, v{AOUT}")
    e("s_mov_b32 s28, s36"); e("s_and_b32 s29, s37, 0xffff"); e("s_mov_b32 s30, 0x800000"); e("s_mov_b32 s31, 0x20000")
    e(f"v_lshlrev_b32 v{VT+8}, 3, v{LN}"); e(f"v_add_u32 v{VT+8}, {T_Z}, v{VT+8}")
    e(f"ds_write_b64 v{VT+8}, v[0:1]")
    if pst: e("s_memrealtime s[74:75]")
    e("s_waitcnt lgkmcnt(0)")
    if stamps: e("s_memrealtime s[52:53]")
    e("s_barrier")
    if pst: e("s_memrealtime s[76:77]")
    def rd_w(ks):
        t, s = ks // 2, ks % 2; slot = t % NS; hi = slot >= 2; b = (slot - (2 if hi else 0)) * STG
        aw = AWH if hi else AW
        o = [f"ds_read_b128 v[{DG}:{DG+3}], v{ADG} offset:{ks*64}"]
        for nb in range(2):
            for q in range(2):
                o.append(f"ds_read_b64_tr_b16 v[{WR+4*nb+2*q}:{WR+4*nb+2*q+1}], v{aw+nb} offset:{b + s*8192 + q*1024}")
        if ks < NCD: o.append(f"ds_read_b128 v[{GB}:{GB+3}], v{AGB} offset:{ks*64}")
        return o
    def rd_x(ks):
        t, s = ks // 2, ks % 2; slot = t % NS; hi = slot >= 2; b = (slot - (2 if hi else 0)) * STG
        X = XA if ks % 2 == 0 else XB
        ax = AXH if hi else AX
        return [f"ds_read_b128 v[{X+4*mb}:{X+4*mb+3}], v{ax+s} offset:{b + mb*2048}" for mb in range(8)]
    def m4():
        return [f"v_mfma_f32_4x4x4_16b_bf16 v[{TT+4*p}:{TT+4*p+3}], v[{DG+2*(p&1)}:{DG+2*(p&1)+1}], v[{WR+2*p}:{WR+2*p+1}], 0" for p in range(4)]
    def masks():
        return [f"v_and_b32 v{DG+q}, v{DG+q}, v{MK0 if q % 2 == 0 else MK1}" for q in range(4)]
    def cvts(ks):
        WP = WPA if ks % 2 == 0 else WPB
        o = []
        for p in range(4):
            o.append(f"v_cvt_pk_bf16_f32 v{WP+2*p}, v{TT+4*p}, v{TT+4*p+1}")
            o.append(f"v_cvt_pk_bf16_f32 v{WP+2*p+1}, v{TT+4*p+2}, v{TT+4*p+3}")
        return o
    def cdm(first=False):
        return [f"v_mfma_f32_16x16x32_bf16 v[{CD+4*nb}:{CD+4*nb+3}], v[{WR+4*nb}:{WR+4*nb+3}], v[{GB}:{GB+3}], " + ("0" if first else f"v[{CD+4*nb}:{CD+4*nb+3}]") for nb in range(2)]
    def mains(ks):
        WP = WPA if ks % 2 == 0 else WPB
        X = XA if ks % 2 == 0 else XB
        o = []
        order = [(nb, mb) for nb in range(2) for mb in (range(8) if nb == 0 else range(7, -1, -1))]
        if ks == 2 * NT - 1: order = [(nb, mb) for mb in range(8) for nb in range(2)]
        for nb, mb in order:
            a = ACC + (mb * 2 + nb) * 4
            o.append(f"v_mfma_f32_16x16x32_bf16 v[{a}:{a+3}], v[{WP+4*nb}:{WP+4*nb+3}], v[{X+4*mb}:{X+4*mb+3}], " + ("0" if ks == 0 else f"v[{a}:{a+3}]"))
        return o
    def epi(mb):
        R = RQ + 2 * mb
        o = []
        if not pk:
            for nb in range(2):
                for r in range(4):
                    o.append(f"v_fma_f32 v{EE+4*nb+r}, v{CB+4*nb+r}, v{R+1}, v{DBR+4*nb+r}")
            for nb in range(2):
                for r in range(4):
                    a = ACC + (mb * 2 + nb) * 4 + r
                    o.append(f"v_fma_f32 v{a}, v{a}, v{R}, v{EE+4*nb+r}")
        for nb in range(2 if pk else 0):
            for h in range(2):
                t = EE + 4 * nb + 2 * h
                o.append(f"v_pk_fma_f32 v[{t}:{t+1}], v[{CB+4*nb+2*h}:{CB+4*nb+2*h+1}], v[{R}:{R+1}], v[{DBR+4*nb+2*h}:{DBR+4*nb+2*h+1}] op_sel:[0,1,0] op_sel_hi:[1,1,1]")
        for nb in range(2 if pk else 0):
            for h in range(2):
                a = ACC + (mb * 2 + nb) * 4 + 2 * h
                t = EE + 4 * nb + 2 * h
                o.append(f"v_pk_fma_f32 v[{a}:{a+1}], v[{a}:{a+1}], v[{R}:{R+1}], v[{t}:{t+1}] op_sel:[0,0,0] op_sel_hi:[1,0,1]")
        q = TT + 4 * (mb % 4)
        a0 = ACC + (mb * 2) * 4; a1 = a0 + 4
        o += [f"v_cvt_pk_bf16_f32 v{q}, v{a0}, v{a0+1}", f"v_cvt_pk_bf16_f32 v{q+1}, v{a0+2}, v{a0+3}",
              f"v_cvt_pk_bf16_f32 v{q+2}, v{a1}, v{a1+1}", f"v_cvt_pk_bf16_f32 v{q+3}, v{a1+2}, v{a1+3}",
              f"s_mov_b32 s33, {mb*16*2048}", "s_nop 0",
              f"v_permlane16_swap_b32 v{q}, v{q+2}", f"v_permlane16_swap_b32 v{q+1}, v{q+3}",
              f"buffer_store_dwordx4 v[{q}:{q+3}], v{AOUT}, s[28:31], s33 offen {staux}"]
        if "f" in epi_drop: o = [x for x in o if "fma" not in x]
        if "s" in epi_drop and mb < 7: o = [x for x in o if "buffer_store" not in x]
        if "p" in epi_drop: o = [x for x in o if "permlane" not in x]
        if "c" in epi_drop: o = [x for x in o if "cvt" not in x]
        return o
    for r in rd_w(0) + rd_x(0): e(r)
    e("s_waitcnt lgkmcnt(8)")
    for m in masks(): e(m)
    e("s_nop 1")
    for m in m4(): e(m)
    for m in cdm(True): e(m)
    e("s_nop 4")
    for c in cvts(0): e(c)
    for r in rd_w(1): e(r)
    e(f"s_waitcnt lgkmcnt({len(rd_w(1)) - 1})")
    NK = 2 * NT
    for ks in range(NK):
        if stamps and not land and ks % 4 == 0 and (inloop or ks == 0):
            e(f"s_memrealtime s[{60+4*(ks//4)}:{61+4*(ks//4)}]"); e(f"s_memtime s[{62+4*(ks//4)}:{63+4*(ks//4)}]")
        n1 = ks + 1 < NK; n2 = ks + 2 < NK
        rx = rd_x(ks + 1) if n1 else []
        rw = rd_w(ks + 2) if n2 else []
        mm = mains(ks)
        m4s = m4() if n1 and do_scale else []
        cv = cvts(ks + 1) if n1 and do_scale else []
        cd = cdm() if n1 and do_cd and ks + 1 < NCD else []
        if ks == NK - 1:
            e("s_waitcnt lgkmcnt(0)")
            if stamps: e("s_memrealtime s[92:93]"); e("s_memtime s[94:95]"); e("s_memrealtime s[54:55]")
            if land: e("s_waitcnt lgkmcnt(0)")
            for mb in range(8):
                e(mm[2*mb]); e(mm[2*mb+1])
                if mb >= 2:
                    for x in epi(mb - 2): e(x)
            for x in epi(6) + epi(7): e(x)
            continue
        for g in range(16):
            if g == 8 and n2 and ks % 2 == 0 and do_bar:
                if land: e(f"s_memrealtime s[{60+2*(ks//2)}:{61+2*(ks//2)}]")
                e("s_barrier")
            if g == 8 and ks == NK - 2: e("s_barrier")
            e(mm[g])
            if g < 8 and rx: e(rx[g])
            if 8 <= g < 8 + len(rw): e(rw[g-8])
            if g < 4 and n1: e(masks()[g])
            if g == M4GAP and n1:
                e(f"s_waitcnt lgkmcnt({M4GAP+1})")
                for m in m4s: e(m)
            if g == M4GAP + 1:
                for c in cd: e(c)
            if cv and M4GAP + 2 <= g < M4GAP + 10: e(cv[g - M4GAP - 2])
            if ks == NCD and g == 14:
                e("s_mov_b32 exec_lo, 0x00030003"); e("s_mov_b32 exec_hi, 0x00030003")
                for nb in range(2): e(f"ds_write_b128 v{ACDW}, v[{CD+4*nb}:{CD+4*nb+3}] offset:{nb*64}")
                e("s_mov_b64 exec, -1")
                extra_lgkm = 2
            if ks == NK - 2 and g >= 8:
                mb = g - 8
                e(f"ds_read_b64 v[{RQ+2*mb}:{RQ+2*mb+1}], v{AST} offset:{mb*128}")
                if mb < 4:
                    nb = mb >> 1
                    e(f"ds_read_b128 v[{(CB if mb % 2 == 0 else DBR)+4*nb}:{(CB if mb % 2 == 0 else DBR)+4*nb+3}], v{ACDR} offset:{nb*64 + (mb % 2)*512}")
        if n1 and ks < NK - 2:
            e(f"s_waitcnt lgkmcnt({0 if ks == NCD else max(len(rw) - 1, 0)})")
    if stamps:
        e("s_memrealtime s[56:57]"); e("s_waitcnt vmcnt(0)")
        e("s_memrealtime s[42:43]"); e("s_memtime s[48:49]"); e("s_waitcnt lgkmcnt(0)")
        e("s_cmp_lg_u32 s20, 0"); e("s_cbranch_scc1 G_done")
        e("s_lshl_b32 s24, s2, 8"); e("s_add_u32 s44, s44, s24"); e("s_addc_u32 s45, s45, 0")
        e("s_sub_u32 s48, s48, s46"); e("s_subb_u32 s49, s49, s47")
        e("s_mov_b64 exec, 1"); e("v_mov_b32 v8, 0")
        for i, r in enumerate([40, 42, 52, 52, 54, 48, 56, 46] + [60 + 2*q for q in range(18)]):
            e(f"v_mov_b32 v4, s{r}"); e(f"v_mov_b32 v5, s{r+1}")
            e(f"global_store_dwordx2 v8, v[4:5], s[44:45] offset:{8*i}"); e("s_waitcnt vmcnt(0)")
        if land:
            e("s_add_u32 s44, s44, 0x20000"); e("s_addc_u32 s45, s45, 0")
            for i in range(15):
                e(f"v_mov_b32 v4, s{60+2*i}"); e(f"v_mov_b32 v5, s{61+2*i}")
                e(f"global_store_dwordx2 v8, v[4:5], s[44:45] offset:{8*(16+i)}"); e("s_waitcnt vmcnt(0)")
        if pst:
            e("s_add_u32 s44, s44, 0x20000"); e("s_addc_u32 s45, s45, 0")
            for i, r in enumerate((74, 52, 76, 60)):
                e(f"v_mov_b32 v4, s{r}"); e(f"v_mov_b32 v5, s{r+1}")
                e(f"global_store_dwordx2 v8, v[4:5], s[44:45] offset:{8*(4+i)}"); e("s_waitcnt vmcnt(0)")
    e.lab("G_done"); e("s_endpgm")
    e.lab("L_end")
    kd(e, KN, 256, 100)
    return e.text()

S = lambda t: ("S", t)
D = lambda j: ("D", j)
WT = ("WT",)
WX = lambda a, n: ("WX", a, n)
CFG = {
  "f": dict(),
  "nopf": dict(codepf=False),
  "pf2": dict(pfslices=2),
}
if __name__ == "__main__":
    open("v5.s", "w").write(gen())
    open("v5_pf2x.s", "w").write(gen(pfslices=2))
    open("v5_nopfx.s", "w").write(gen(codepf=False))
    for n, kw in CFG.items():
        open(f"v5_{n}.s", "w").write(gen(stamps=True, pst=True, **kw)); print(n, "publish at t =", gen.pub)
        open(f"v5i_{n}.s", "w").write(gen(stamps=True, inloop=True, **kw))
        open(f"v5l_{n}.s", "w").write(gen(stamps=True, land=True, **kw))
```

```python
import sys
sys.path.insert(0, "tools")
from gemm_lib import *

STG = 32768
NS = 4
T_G = NS * STG
T_B = T_G + 4096 + 64
T_Z = T_B + 1024 + 64
T_ST = T_Z + 1024 + 128
CDS = 528
T_CD = T_ST + 1024
T_CF = T_CD + 16 * CDS
LDS_BYTES = T_CF + 1024
NT = 16
WS_STATS = 0x100000
WS_CD = 0x120000


DEF_PRO = [("S", 0), ("G",), ("S", 1)]
DEF_POST = [("S", 2)]
DEF_AT = {0: [("D", 2), ("D", 3)], 2: [("D", 4), ("D", 5), ("D", 0)], 4: [("D", 6), ("D", 7), ("D", 1)]}

def gen(stamps=False, xaux="nt", waux="", staux="sc0 sc1", prio=1, lprio=0, do_cd=True, do_scale=True, do_bar=True, inloop=False,
        M4GAP=4, caux="nt", tstat=14, budget=13, pst=False, pro=None, post=None, at=None, tget=13, tnonce=3, land=False, pk=False, maskspread=True, epi_drop='', tcdpub=5, rot=True, codepf=True, pfslices=8, ghead=True, NQ=4, morder='snake', steps=None, epi_lds=False, wfirst=False, xoff=0, pfearly=True):
    NCD = 32 // NQ
    QSH = {4: 9, 2: 10}[NQ]
    if NQ == 2 and tcdpub == 5: tcdpub = 9
    pro = DEF_PRO if pro is None else pro
    post = DEF_POST if post is None else post
    at = DEF_AT if at is None else at
    e = E()
    e.raw(f"; @launch grid=(256,1,1) block=(512,1,1) lds={LDS_BYTES}")
    e.raw('.amdgcn_target "amdgcn-amd-amdhsa--gfx950"'); e.raw(".text")
    head(e, KN)
    e("s_cmp_ge_u32 s2, 256"); e("s_cbranch_scc1 G_done")
    if stamps: e("s_memrealtime s[40:41]"); e("s_memtime s[46:47]")
    e("s_load_dwordx4 s[4:7], s[0:1], 0")
    e("s_load_dwordx4 s[16:19], s[0:1], 16")
    e("s_load_dwordx4 s[36:39], s[0:1], 32")
    e("s_load_dwordx2 s[44:45], s[0:1], 48")
    e("v_lshrrev_b32 v1, 6, v0"); e("v_and_b32 v2, 63, v0")
    e("s_and_b32 s23, s2, 7"); e("s_lshr_b32 s49, s2, 3")
    e("v_readfirstlane_b32 s20, v1")
    e("s_lshl_b32 s21, s23, 2"); e("s_and_b32 s25, s49, 3"); e("s_add_u32 s21, s21, s25")
    e("s_lshr_b32 s22, s49, 2")
    e(f"s_and_b32 s51, s25, {NQ-1}"); e(f"s_lshl_b32 s51, s51, {QSH}")
    if xoff:
        e("s_and_b32 s24, s23, 3"); e(f"s_mul_i32 s24, s24, {128*xoff}"); e("s_add_u32 s51, s51, s24"); e("s_and_b32 s51, s51, 0x7ff")
    def code_prefetch(wreg):
        e("s_getpc_b64 s[60:61]")
        e.lab("L_pc")
        e(f"s_sub_u32 s60, s60, L_pc - {KN}"); e("s_subb_u32 s61, s61, 0")
        e(f"s_and_b32 s62, s49, {pfslices-1}"); e("s_lshl_b32 s62, s62, 2"); e(f"s_add_u32 s62, s62, {wreg}")
        e(f"s_mul_i32 s62, s62, ((L_end - {KN} + 127) / 128 + {4*pfslices-1}) / {4*pfslices}")
        e(f"v_min_u32 v3, ((L_end - {KN} + 127) / 128 + {4*pfslices-1}) / {4*pfslices} - 1, v2")
        e("v_add_u32 v3, s62, v3"); e(f"v_min_u32 v3, (L_end - {KN} - 4) / 128, v3"); e("v_lshlrev_b32 v3, 7, v3")
        e("global_load_dword v255, v3, s[60:61]")
    if codepf and pfearly:
        e("s_cmp_lt_u32 s20, 4"); e("s_cbranch_scc1 L_loader")
        e("s_sub_u32 s63, s20, 4")
        code_prefetch("s63")
        e("s_branch L_consumer")
        e.lab("L_loader")
    else:
        e("s_cmp_ge_u32 s20, 4"); e("s_cbranch_scc1 L_consumer")
    DA, DB = 8, 12
    if lprio: e(f"s_setprio {lprio}")
    def addr_x():
        e("v_lshrrev_b32 v3, 3, v2"); e("v_and_b32 v7, 7, v2")
        e("s_lshl_b32 s24, s20, 5"); e("v_add_u32 v3, s24, v3"); e("v_lshlrev_b32 v3, 11, v3")
        for i in range(2):
            e(f"v_add_u32 v6, {4*i}, v5"); e("v_xor_b32 v6, v6, v7"); e("v_lshlrev_b32 v6, 4, v6"); e(f"v_add_u32 v{DA+i}, v6, v3")
            if i: e(f"v_add_u32 v{DA+i}, {8*2048}, v{DA+i}")
        e(f"v_add_u32 v{DA+2}, {16*2048}, v{DA}"); e(f"v_add_u32 v{DA+3}, {16*2048}, v{DA+1}")
        e("s_lshl_b32 s32, s21, 18")
    def srd_x():
        e("s_mov_b32 s8, s4"); e("s_and_b32 s9, s5, 0xffff"); e("s_mov_b32 s10, 0x800000"); e("s_mov_b32 s11, 0x20000")
    e("v_lshrrev_b32 v5, 4, v2")
    e("s_lshl_b32 s24, s20, 4"); e("v_add_u32 v3, s24, v5"); e("v_lshlrev_b32 v3, 11, v3"); e("v_and_b32 v4, 15, v2")
    for h in range(2):
        e(f"v_add_u32 v6, {4*h}, v5"); e("v_lshlrev_b32 v6, 1, v6"); e("v_xor_b32 v6, v6, v4"); e("v_lshlrev_b32 v6, 4, v6")
        e(f"v_add_u32 v{DB+2*h}, v6, v3")
        if h: e(f"v_add_u32 v{DB+2}, {8*2048}, v{DB+2}")
        e(f"v_add_u32 v{DB+2*h+1}, {4*2048}, v{DB+2*h}")
    e("s_lshl_b32 s33, s22, 8"); e("s_lshl_b32 s34, s20, 12")
    if not wfirst: addr_x()
    e("s_waitcnt lgkmcnt(0)")
    if pst: e("s_memrealtime s[70:71]")
    if not wfirst: srd_x()
    e("s_mov_b32 s12, s18"); e("s_and_b32 s13, s19, 0xffff"); e("s_mov_b32 s14, 0x200000"); e("s_mov_b32 s15, 0x20000")
    ops = []
    def op(tag, ins): e(ins); ops.append(tag)
    def wait_for(tag):
        last = max(i for i, t in enumerate(ops) if t == tag)
        e(f"s_waitcnt vmcnt({len(ops) - 1 - last})")
    ORD = (0, 4, 1, 5, 2, 6, 3, 7)
    def dma0_split():
        e("s_lshl_b32 s57, s51, 10"); e("s_add_u32 s57, s57, s33")
        for i in range(4):
            e(f"s_add_u32 m0, s34, {16384 + i*1024}"); e("s_nop 0")
            op("S0w", f"buffer_load_dwordx4 v{DB+i}, s[12:15], s57 offen {waux} lds")
        addr_x(); srd_x(); e("s_add_u32 s56, s51, s32")
        for i in range(4):
            e(f"s_add_u32 m0, s34, {i*1024}"); e("s_nop 0")
            op("S0", f"buffer_load_dwordx4 v{DA+i}, s[8:11], s56 offen {xaux} lds")
    def dma(t):
        slot = t % NS
        e(f"s_add_u32 s56, s51, {t*128}"); e("s_and_b32 s56, s56, 0x7ff"); e("s_lshl_b32 s57, s56, 10")
        e("s_add_u32 s56, s56, s32"); e("s_add_u32 s57, s57, s33")
        for idx in ORD:
            if idx < 4:
                e(f"s_add_u32 m0, s34, {slot*STG + idx*1024}"); e("s_nop 0")
                op(f"S{t}", f"buffer_load_dwordx4 v{DA+idx}, s[8:11], s56 offen {xaux} lds")
            else:
                e(f"s_add_u32 m0, s34, {slot*STG + 16384 + (idx-4)*1024}"); e("s_nop 0")
                op(f"S{t}", f"buffer_load_dwordx4 v{DB+idx-4}, s[12:15], s57 offen {waux} lds")
    CH = 20
    setup = set()
    def need(what):
        if what in setup: return
        setup.add(what)
        if what == "D":
            e("v_lshlrev_b32 v18, 11, v5"); e("v_lshlrev_b32 v17, 4, v4"); e("v_add_u32 v16, v18, v17")
            e("s_lshl_b32 s35, s21, 7"); e("s_lshl_b32 s24, s22, 4"); e("s_add_u32 s35, s35, s24"); e("s_lshl_b32 s24, s20, 2"); e("s_add_u32 s35, s35, s24")
            e("s_mov_b32 s48, s35"); e("s_lshl_b32 s35, s35, 11")
        elif what == "WT":
            e("s_lshl_b32 s24, s2, 2"); e("s_add_u32 s24, s24, s20"); e("s_lshl_b32 s24, s24, 4")
            e("v_add_u32 v7, s24, v4"); e("v_lshlrev_b32 v7, 7, v7")
        elif what == "WX":
            e("v_lshrrev_b32 v18, 3, v2"); e("v_lshlrev_b32 v18, 17, v18"); e("v_and_b32 v3, 7, v2"); e("v_lshlrev_b32 v3, 7, v3"); e("v_add_u32 v18, v18, v3")
            e("s_lshl_b32 s50, s49, 1"); e("s_lshr_b32 s24, s20, 1"); e("s_add_u32 s50, s50, s24"); e("s_lshl_b32 s50, s50, 11")
            e("s_and_b32 s24, s20, 1"); e("s_lshl_b32 s24, s24, 10"); e("s_add_u32 s50, s50, s24")
    def item(it):
        k = it[0]
        if k == "S": dma(it[1])
        elif k == "G":
            e("s_and_b32 s24, s20, 1"); e("s_lshr_b32 s25, s20, 1"); e("s_lshl_b32 s25, s25, 11"); e(f"s_add_u32 s25, s25, {T_G}")
            e("s_cmp_eq_u32 s24, 0"); e(f"s_cselect_b32 s59, s25, {T_B}"); e("s_cselect_b64 vcc, -1, 0"); e("s_cselect_b32 s58, 1024, 0")
            e("s_mov_b32 m0, s59"); e("v_cndmask_b32 v88, v87, v19, vcc")
            op("G", "buffer_load_dwordx4 v88, s[52:55], 0 offen lds")
            e("s_add_u32 s25, s59, 1024"); e("s_cmp_eq_u32 s24, 0"); e("s_cselect_b32 m0, s25, s59")
            e("s_cselect_b32 exec_lo, -1, 0xff"); e("s_cselect_b32 exec_hi, -1, 0")
            op("G", "buffer_load_dwordx4 v88, s[52:55], s58 offen lds")
            e("s_mov_b64 exec, -1")
        elif k == "D":
            need("D"); j = it[1]
            if xoff % 2:
                e(f"s_add_u32 s26, s51, {j*256}"); e("v_add_u32 v3, s26, v17"); e("v_and_b32 v3, 0x7ff, v3"); e("v_add_u32 v3, v3, v18")
                op(f"D{j}", f"buffer_load_dwordx4 v[{CH+4*j}:{CH+4*j+3}], v3, s[8:11], s35 offen {caux}")
            else:
                e(f"s_add_u32 s26, s51, {j*256}"); e("s_and_b32 s26, s26, 0x7ff"); e("s_add_u32 s26, s26, s35")
                op(f"D{j}", f"buffer_load_dwordx4 v[{CH+4*j}:{CH+4*j+3}], v16, s[8:11], s26 offen {caux}")
        elif k == "WT":
            need("WT"); op("WT", "buffer_load_dword v17, v7, s[12:15], 0 offen")
        elif k == "WX":
            need("WX"); a, n = it[1], it[2]
            e(f"s_add_u32 s26, s50, {a*64*2048}")
            if n < 8:
                e(f"s_mov_b32 exec_lo, {hex(((1 << (8*n)) - 1) & 0xffffffff)}"); e(f"s_mov_b32 exec_hi, {hex(((1 << (8*n)) - 1) >> 32)}")
            op("WX", "buffer_load_dword v17, v18, s[12:15], s26 offen")
            if n < 8: e("s_mov_b64 exec, -1")
    def heads():
        e("v_lshlrev_b32 v19, 4, v2")
        e("v_add_u32 v87, s51, v19"); e("v_and_b32 v87, 0x7ff, v87")
        e("s_and_b32 s24, s20, 1"); e("s_cmp_eq_u32 s24, 0")
        e("s_cselect_b32 s52, s6, s16"); e("s_cselect_b32 s53, s7, s17")
        e(f"s_add_u32 s59, s51, {T_G}"); e("s_cmp_eq_u32 s24, 0"); e(f"s_cselect_b32 s59, s59, {T_B}")
        e("s_and_b32 s53, s53, 0xffff"); e("s_mov_b32 s54, 2048"); e("s_mov_b32 s55, 0x20000")
        e("s_mov_b32 m0, s59"); e("s_mov_b64 exec, 0xff")
        op("GH", "buffer_load_dwordx4 v87, s[52:55], 0 offen lds")
        e("s_mov_b64 exec, -1")
    if wfirst:
        assert pro[0] == ("S", 0)
        e("s_lshl_b32 s57, s51, 10"); e("s_add_u32 s57, s57, s33")
        for i in range(4):
            e(f"s_add_u32 m0, s34, {16384 + i*1024}"); e("s_nop 0")
            op("S0w", f"buffer_load_dwordx4 v{DB+i}, s[12:15], s57 offen {waux} lds")
        heads()
        addr_x(); srd_x(); e("s_add_u32 s56, s51, s32")
        for i in range(4):
            e(f"s_add_u32 m0, s34, {i*1024}"); e("s_nop 0")
            op("S0", f"buffer_load_dwordx4 v{DA+i}, s[8:11], s56 offen {xaux} lds")
        rest = list(pro[1:])
        pre_items = [it for it in rest if it[0] != "S"]; late_items = [it for it in rest if it[0] == "S"]
        for it in pre_items: item(it)
    else:
        heads()
        for it in pro: item(it)
    if pst: e("s_memrealtime s[76:77]")
    e("v_mov_b32 v52, 0"); e("v_mov_b32 v53, 0")
    e("s_mov_b32 s27, 0x3f803f80")
    need("D")
    e("v_add_u32 v55, s48, v5"); e("v_lshlrev_b32 v55, 4, v55"); e(f"v_add_u32 v55, {WS_STATS}, v55")
    e("v_and_b32 v3, 31, v2"); e("s_lshl_b32 s24, s21, 7"); e("s_lshl_b32 s25, s20, 5"); e("s_add_u32 s24, s24, s25")
    e("v_add_u32 v68, s24, v3"); e("v_lshlrev_b32 v68, 4, v68"); e(f"v_add_u32 v68, {WS_STATS}, v68")
    e("v_add_u32 v69, s25, v3"); e("v_lshlrev_b32 v70, 2, v69"); e("v_lshlrev_b32 v69, 3, v69"); e(f"v_add_u32 v69, {T_ST}, v69")
    e("v_lshrrev_b32 v6, 5, v2"); e("v_lshlrev_b32 v6, 9, v6"); e("v_add_u32 v70, v70, v6")
    e("v_lshrrev_b32 v6, 5, v2"); e(f"v_mul_u32_u24 v6, {CDS - 512}, v6"); e("v_add_u32 v71, v70, v6"); e(f"v_add_u32 v71, {T_CD}, v71")
    e(f"v_add_u32 v73, {T_CF}, v70"); e("v_mov_b32 v86, v73"); e("v_lshlrev_b32 v74, 1, v70"); e(f"v_add_u32 v74, {WS_CD}, v74")
    e("s_lshl_b32 s24, s22, 5"); e("s_add_u32 s25, s24, s21"); e("s_lshl_b32 s25, s25, 11"); e("v_add_u32 v75, s25, v74")
    e(f"s_and_b32 s25, s21, {32-NQ}"); e("s_add_u32 s25, s25, s24"); e("s_lshl_b32 s25, s25, 11"); e("v_add_u32 v76, s25, v74"); e("v_add_u32 v77, 4096, v76")
    if epi_lds:
        e("v_and_b32 v3, 15, v2")
        for i in range(4):
            e(f"v_add_u32 v6, {4*i}, v5"); e("v_xor_b32 v4, v6, v3"); e("v_lshlrev_b32 v4, 4, v4"); e("v_lshlrev_b32 v6, 8, v6"); e(f"v_add_u32 v{88+i}, v4, v6")
            e(f"s_lshl_b32 s24, s20, 12"); e(f"v_add_u32 v{88+i}, s24, v{88+i}")
        e("s_and_b32 s25, s20, 1"); e("s_lshl_b32 s25, s25, 3")
        for i in range(2):
            e(f"s_add_u32 s24, s25, {4*i}"); e("v_add_u32 v6, s24, v5"); e("v_xor_b32 v4, v6, v3"); e("v_lshlrev_b32 v4, 4, v4")
            e(f"s_lshl_b32 s24, s20, 3"); e(f"s_add_u32 s24, s24, {64 + 4*i}"); e("v_add_u32 v6, s24, v5"); e("v_lshlrev_b32 v6, 8, v6"); e(f"v_add_u32 v{92+i}, v4, v6")
        e("v_lshlrev_b32 v6, 11, v5"); e("v_lshlrev_b32 v4, 4, v3"); e("v_add_u32 v94, v4, v6")
        e("s_lshl_b32 s24, s21, 18"); e("s_lshl_b32 s25, s22, 8"); e("s_add_u32 s24, s24, s25"); e("v_add_u32 v94, s24, v94")
        e("v_and_b32 v4, 15, v2")
    if wfirst:
        wait_for("GH"); e("s_barrier")
        for it in late_items: item(it)
    wait_for("S0")
    if land: e("s_memrealtime s[60:61]")
    if pst: e("s_memrealtime s[78:79]")
    e("s_barrier")
    for it in post: item(it)
    order_issue = {}
    def chunk_ready(j):
        seq = list(pro) + list(post)
        if ("D", j) in seq:
            i = seq.index(("D", j))
            later = [x[1] for x in seq[i:] if x[0] == "S"]
            if later: return max(0, later[0] - 1)
            return 2
        for t, its in at.items():
            if ("D", j) in its: return t + 2
        raise ValueError(j)
    side = []
    def V(t, ins): side.append((t, ins))
    for j in sorted(range(8), key=chunk_ready):
        for q in range(4):
            V(chunk_ready(j), f"v_dot2c_f32_bf16 v52, s27, v{CH+4*j+q}")
            V(chunk_ready(j), f"v_dot2c_f32_bf16 v53, v{CH+4*j+q}, v{CH+4*j+q}")
    nacc = len(side)
    for sh in ("quad_perm:[1,0,3,2]", "quad_perm:[2,3,0,1]", "row_half_mirror", "row_mirror"):
        V(0, f"v_add_f32_dpp v52, v52, v52 {sh} row_mask:0xf bank_mask:0xf"); V(0, f"v_add_f32_dpp v53, v53, v53 {sh} row_mask:0xf bank_mask:0xf"); V(0, "s_nop 0")
    V(0, "v_mul_f32 v52, 0x3a800000, v52"); V(0, "v_mul_f32 v53, 0x3a800000, v53")
    V(0, "v_fma_f32 v53, -v52, v52, v53"); V(0, "v_max_f32 v53, 0, v53"); V(0, "v_add_f32 v53, 0x3727c5ac, v53")
    V(0, "v_rsq_f32 v56, v53"); V(0, "s_nop 0")
    V(0, "v_mul_f32 v58, v52, v56"); V(0, "v_sub_f32 v58, 0, v58")
    nonce_state = {"done": False}
    def get_nonce():
        e("s_waitcnt lgkmcnt(0)")
        if nonce_state["done"]: return
        nonce_state["done"] = True
        e("s_cmp_lg_u32 s28, 0"); e("s_cbranch_scc1 L_have_nonce")
        e("s_mov_b32 s29, 0"); e("v_mov_b32 v4, 0")
        e.lab("L_nonce_poll")
        e("global_load_dword v6, v4, s[38:39] sc0 sc1"); e("s_waitcnt vmcnt(0)"); e("s_nop 0")
        e("v_readfirstlane_b32 s28, v6"); e("s_add_u32 s29, s29, 1")
        e("s_cmp_lg_u32 s28, 0"); e("s_cbranch_scc1 L_have_nonce")
        e("s_cmp_lt_u32 s29, 100000"); e("s_cbranch_scc1 L_nonce_poll")
        e.lab("L_have_nonce")
    def publish():
        get_nonce()
        e("s_mov_b32 s30, 0x00010001"); e("s_mov_b32 s31, 0x00010001"); e("s_mov_b64 exec, s[30:31]")
        e("v_mov_b32 v57, s28"); e("v_mov_b32 v59, s28")
        op("PUB", "global_store_dwordx4 v55, v[56:59], s[44:45] sc0 sc1")
        e("s_mov_b64 exec, -1")
    state = {"pos": 0, "pub": None}
    def run_side(t):
        n = 0
        nD = sum(1 for it in at.get(t, []) if it[0] in ("D", "WT", "WX"))
        bud = budget - 3 * nD - (6 if t == tcdpub else 0) - (8 if t == tget else 0)
        while state["pos"] < len(side) and n < bud and side[state["pos"]][0] <= t:
            if state["pos"] == nacc and n > 0: break
            e(side[state["pos"]][1]); state["pos"] += 1
            if not side[state["pos"]-1][1].startswith("s_"): n += 1
        if t == tnonce: e("s_load_dword s28, s[38:39], 0")
        if state["pos"] == len(side) and state["pub"] is None and (n <= 4):
            publish(); state["pub"] = t
    def emit_collect():
        e("s_mov_b32 s29, 0")
        e.lab("L_stat_check")
        e("s_waitcnt vmcnt(0)")
        e("v_cmp_eq_u32 s[30:31], s28, v65"); e("v_cmp_eq_u32 vcc, s28, v67"); e("s_add_u32 s29, s29, 1"); e("s_nop 1")
        e("s_and_b64 s[30:31], vcc, s[30:31]")
        for p_ in range(NQ):
            e(f"v_cmp_eq_u32 vcc, s28, v{79+2*p_}"); e("s_nop 3"); e("s_and_b64 s[30:31], vcc, s[30:31]")
        e("s_cmp_eq_u64 s[30:31], exec"); e("s_cbranch_scc1 L_stat_ok")
        e("s_cmp_ge_u32 s29, 100000"); e("s_cbranch_scc1 L_stat_ok")
        e("s_sleep 2")
        e("global_load_dwordx4 v[64:67], v68, s[44:45] sc0 sc1")
        for p_ in range(NQ):
            e(f"global_load_dwordx2 v[{78+2*p_}:{79+2*p_}], v{76 if p_ < 2 else 77}, s[44:45] offset:{2048*(p_ % 2)} sc0 sc1")
        e("s_branch L_stat_check")
        e.lab("L_stat_ok")
        e("v_mov_b32 v65, v66"); e("v_add_f32 v78, v78, v80")
        if NQ == 4: e("v_add_f32 v82, v82, v84")
        e("ds_write_b64 v69, v[64:65]")
        if NQ == 4: e("v_add_f32 v78, v78, v82")
        e("ds_write_b32 v86, v78")
        if stamps: e("s_memrealtime s[58:59]")
        e("s_waitcnt lgkmcnt(0)")
    for t in range(NT - 1):
        wait_for(f"S{t+1}")
        if land: e(f"s_memrealtime s[{62+2*t}:{63+2*t}]")
        if do_bar: e("s_barrier")
        for it in at.get(t, []): item(it)
        if t + 3 < NT: dma(t + 3)
        if t == tcdpub:
            e("ds_read_b32 v72, v71")
            get_nonce()
            e("v_mov_b32 v73, s28")
            op("PUBCD", "global_store_dwordx2 v75, v[72:73], s[44:45] sc0 sc1")
        if t == tget:
            for p_ in range(NQ):
                op("GETCD", f"global_load_dwordx2 v[{78+2*p_}:{79+2*p_}], v76, s[44:45] offset:{2048*p_} sc0 sc1" if 2048*p_ < 4096 else
                            f"global_load_dwordx2 v[{78+2*p_}:{79+2*p_}], v77, s[44:45] offset:{2048*p_ - 4096} sc0 sc1")
            op("GET", "global_load_dwordx4 v[64:67], v68, s[44:45] sc0 sc1")
        run_side(t)
        if t == tstat: emit_collect()
    assert state["pub"] is not None and state["pub"] < tget, state
    gen.pub = state["pub"]
    e("s_barrier")
    if epi_lds:
        e("s_mov_b32 s60, s36"); e("s_and_b32 s61, s37, 0xffff"); e("s_mov_b32 s62, 0x800000"); e("s_mov_b32 s63, 0x20000")
        e("s_lshl_b32 s25, s20, 15")
        e("s_barrier")
        for i in range(4): e(f"ds_read_b128 v[{20+4*i}:{23+4*i}], v{88+i}")
        for i in range(4):
            e(f"s_add_u32 s26, s25, {4*i*2048}"); e(f"s_waitcnt lgkmcnt({3-i})")
            e(f"buffer_store_dwordx4 v[{20+4*i}:{23+4*i}], v94, s[60:63], s26 offen {staux}")
        e("s_lshl_b32 s25, s20, 14"); e(f"s_add_u32 s25, s25, {64*2048}")
        e("s_barrier")
        for i in range(2): e(f"ds_read_b128 v[{36+4*i}:{39+4*i}], v{92+i}")
        for i in range(2):
            e(f"s_add_u32 s26, s25, {4*i*2048}"); e(f"s_waitcnt lgkmcnt({1-i})")
            e(f"buffer_store_dwordx4 v[{36+4*i}:{39+4*i}], v94, s[60:63], s26 offen {staux}")
    if stamps:
        e("s_cmp_lg_u32 s20, 0"); e("s_cbranch_scc1 G_done")
        e("s_lshl_b32 s24, s2, 8"); e("s_add_u32 s44, s44, s24"); e("s_addc_u32 s45, s45, 0")
        e("s_mov_b64 exec, 1"); e("v_mov_b32 v8, 0")
        e("v_mov_b32 v4, s58"); e("v_mov_b32 v5, s59"); e(f"global_store_dwordx2 v8, v[4:5], s[44:45] offset:{8*27}")
        e("v_mov_b32 v4, s29"); e("v_mov_b32 v5, 0"); e(f"global_store_dwordx2 v8, v[4:5], s[44:45] offset:{8*28}")
        if land:
            e("s_waitcnt lgkmcnt(0)")
            e("s_add_u32 s44, s44, 0x20000"); e("s_addc_u32 s45, s45, 0")
            for i in range(16):
                e(f"v_mov_b32 v4, s{60+2*i}"); e(f"v_mov_b32 v5, s{61+2*i}")
                e(f"global_store_dwordx2 v8, v[4:5], s[44:45] offset:{8*i}"); e("s_waitcnt vmcnt(0)")
        if pst:
            e("s_waitcnt lgkmcnt(0)")
            e("s_add_u32 s44, s44, 0x20000"); e("s_addc_u32 s45, s45, 0")
            for i, r in enumerate((40, 70, 76, 78)):
                e(f"v_mov_b32 v4, s{r}"); e(f"v_mov_b32 v5, s{r+1}")
                e(f"global_store_dwordx2 v8, v[4:5], s[44:45] offset:{8*i}"); e("s_waitcnt vmcnt(0)")
    e("s_endpgm")
    e.lab("L_consumer")
    ACC, CD, XA, XB, WR, DG, GB, TT, WPA, WPB = 0, 64, 72, 104, 136, 144, 148, 152, 168, 176
    AX, AXH, AW, AWH, ADG, AGB = 184, 186, 188, 190, 192, 193
    VT = 194
    LN = VT + 10
    CB, DBR, RQ, EE = 208, 216, 224, 240
    AST, AOUT = 248, 249
    e("s_sub_u32 s20, s20, 4")
    if codepf and not pfearly: code_prefetch("s20")
    if prio: e(f"s_setprio {prio}")
    e(f"v_mov_b32 v{LN}, v2")
    e("s_lshl_b32 s24, s20, 6"); e(f"v_add_u32 v{VT}, s24, v{LN}")
    e(f"v_lshlrev_b32 v{VT+2}, 3, v{VT}")
    e("s_waitcnt lgkmcnt(0)")
    e("s_or_b32 s24, s2, s20"); e("s_cmp_lg_u32 s24, 0"); e("s_cbranch_scc1 L_no_nonce")
    e("s_memrealtime s[28:29]"); e("s_waitcnt lgkmcnt(0)"); e("s_or_b32 s28, s28, 1")
    e(f"v_mov_b32 v{VT+3}, s28"); e(f"v_mov_b32 v{VT+4}, 0")
    e("s_mov_b64 exec, 1"); e(f"global_store_dword v{VT+4}, v{VT+3}, s[38:39] sc0 sc1"); e("s_mov_b64 exec, -1")
    e.lab("L_no_nonce")
    e(f"v_and_b32 v{VT+3}, 3, v{LN}")
    MK0, MK1 = 250, 251
    e(f"v_mov_b32 v{MK0}, 0"); e(f"v_mov_b32 v{MK1}, 0")
    e(f"v_mov_b32 v{VT+6}, 0xffff"); e(f"v_mov_b32 v{VT+7}, 0xffff0000")
    for i, (dst, src) in enumerate(((MK0, 6), (MK0, 7), (MK1, 6), (MK1, 7))):
        e(f"v_cmp_eq_u32 vcc, {i}, v{VT+3}"); e("s_nop 1"); e(f"v_cndmask_b32 v{dst}, v{dst}, v{VT+src}, vcc")
    e(f"v_and_b32 v{VT+3}, 15, v{LN}"); e(f"v_lshrrev_b32 v{VT+6}, 4, v{LN}")
    e(f"v_lshrrev_b32 v{VT+7}, 1, v{VT+3}"); e(f"v_lshlrev_b32 v{VT+8}, 7, v{VT+3}")
    for s in range(2):
        e(f"v_add_u32 v{VT+9}, {4*s}, v{VT+6}"); e(f"v_xor_b32 v{VT+9}, v{VT+9}, v{VT+7}"); e(f"v_lshlrev_b32 v{VT+9}, 4, v{VT+9}")
        e(f"v_add_u32 v{AX+s}, v{VT+8}, v{VT+9}"); e(f"v_add_u32 v{AXH+s}, 0x10000, v{AX+s}")
    e(f"v_lshrrev_b32 v{VT+7}, 2, v{VT+3}")
    e(f"v_and_b32 v{VT+8}, 1, v{VT+6}"); e(f"v_lshlrev_b32 v{VT+8}, 2, v{VT+8}"); e(f"v_or_b32 v{VT+8}, v{VT+8}, v{VT+7}")
    e(f"v_lshlrev_b32 v{VT+9}, 3, v{VT+6}"); e(f"v_add_u32 v{VT+9}, v{VT+9}, v{VT+7}"); e(f"v_lshlrev_b32 v{VT+9}, 8, v{VT+9}")
    e(f"v_and_b32 v{VT+7}, 3, v{LN}"); e(f"v_lshlrev_b32 v{VT+7}, 3, v{VT+7}"); e(f"v_add_u32 v{VT+9}, v{VT+9}, v{VT+7}")
    e(f"v_add_u32 v{VT+9}, 16384, v{VT+9}"); e("s_lshl_b32 s24, s20, 1")
    for nb in range(2):
        e(f"s_add_u32 s25, s24, {nb}"); e(f"v_xor_b32 v{VT+7}, s25, v{VT+8}"); e(f"v_lshlrev_b32 v{VT+7}, 5, v{VT+7}")
        e(f"v_add_u32 v{AW+nb}, v{VT+9}, v{VT+7}"); e(f"v_add_u32 v{AWH+nb}, 0x10000, v{AW+nb}")
    e(f"v_lshlrev_b32 v{VT+7}, 4, v{VT+6}"); e(f"v_add_u32 v{ADG}, {T_G}, v{VT+7}"); e(f"v_add_u32 v{ADG}, s51, v{ADG}")
    e(f"v_lshlrev_b32 v{VT+8}, 4, v{VT+6}")
    e(f"v_mov_b32 v{AGB}, {T_Z}"); e(f"v_mov_b32 v{VT+7}, {T_B}")
    e(f"v_cmp_eq_u32 vcc, 1, v{VT+3}"); e("s_nop 1"); e(f"v_cndmask_b32 v{AGB}, v{AGB}, v{VT+7}, vcc")
    e(f"v_add_u32 v{AGB}, v{AGB}, v{VT+8}")
    ONE = 244
    e(f"v_mov_b32 v{ONE}, 0"); e(f"v_mov_b32 v{VT+7}, 0x3f803f80")
    e(f"v_cmp_eq_u32 vcc, 0, v{VT+3}"); e("s_nop 1"); e(f"v_cndmask_b32 v{ONE}, v{ONE}, v{VT+7}, vcc")
    for q in range(1, 4): e(f"v_mov_b32 v{ONE+q}, v{ONE}")
    ACDW, ACDR = 252, 253
    e(f"v_lshlrev_b32 v{VT+7}, 4, v{VT+6}"); e("s_lshl_b32 s24, s20, 7"); e(f"v_add_u32 v{VT+7}, s24, v{VT+7}")
    e(f"v_add_u32 v{ACDR}, {T_CF}, v{VT+7}")
    e(f"v_mul_u32_u24 v{VT+8}, {CDS}, v{VT+3}"); e(f"v_add_u32 v{VT+7}, v{VT+7}, v{VT+8}"); e(f"v_add_u32 v{ACDW}, {T_CD}, v{VT+7}")
    e("v_mov_b32 v0, 0"); e("v_mov_b32 v1, 0")
    e(f"v_lshlrev_b32 v{AST}, 3, v{VT+3}"); e(f"v_add_u32 v{AST}, {T_ST}, v{AST}")
    e("s_lshl_b32 s24, s21, 7"); e(f"v_add_u32 v{AOUT}, s24, v{VT+3}"); e(f"v_lshlrev_b32 v{AOUT}, 11, v{AOUT}")
    e(f"v_and_b32 v{VT+7}, 1, v{VT+6}"); e(f"v_lshlrev_b32 v{VT+7}, 5, v{VT+7}")
    e(f"v_lshrrev_b32 v{VT+8}, 1, v{VT+6}"); e(f"v_lshlrev_b32 v{VT+8}, 4, v{VT+8}"); e(f"v_add_u32 v{VT+7}, v{VT+7}, v{VT+8}")
    e("s_lshl_b32 s24, s22, 8"); e("s_lshl_b32 s25, s20, 6"); e("s_add_u32 s24, s24, s25")
    e(f"v_add_u32 v{AOUT}, v{AOUT}, v{VT+7}"); e(f"v_add_u32 v{AOUT}, s24, v{AOUT}")
    e("s_mov_b32 s28, s36"); e("s_and_b32 s29, s37, 0xffff"); e("s_mov_b32 s30, 0x800000"); e("s_mov_b32 s31, 0x20000")
    if epi_lds:
        e(f"v_and_b32 v{VT+7}, 1, v{VT+6}"); e(f"v_lshlrev_b32 v{VT+7}, 1, v{VT+7}"); e(f"v_lshrrev_b32 v{VT+8}, 1, v{VT+6}"); e(f"v_add_u32 v{VT+7}, v{VT+7}, v{VT+8}")
        e("s_lshl_b32 s24, s20, 2"); e(f"v_add_u32 v{VT+7}, s24, v{VT+7}"); e(f"v_xor_b32 v{VT+7}, v{VT+7}, v{VT+3}"); e(f"v_lshlrev_b32 v{VT+7}, 4, v{VT+7}")
        e(f"v_lshlrev_b32 v{VT+8}, 8, v{VT+3}"); e(f"v_add_u32 v{AOUT}, v{VT+7}, v{VT+8}")
        e("s_and_b32 s25, s20, 1"); e("s_lshl_b32 s25, s25, 3")
        for i in range(2):
            e(f"s_add_u32 s24, s25, {4*i}"); e(f"v_add_u32 v{VT+7}, s24, v{VT+6}"); e(f"v_xor_b32 v{VT+8}, v{VT+7}, v{VT+3}"); e(f"v_lshlrev_b32 v{VT+8}, 4, v{VT+8}")
            e("s_lshl_b32 s24, s20, 3"); e(f"s_add_u32 s24, s24, {96 + 4*i}"); e(f"v_add_u32 v{VT+7}, s24, v{VT+6}"); e(f"v_lshlrev_b32 v{VT+7}, 8, v{VT+7}")
            e(f"v_add_u32 v{VT+i}, v{VT+7}, v{VT+8}")
        e(f"v_lshlrev_b32 v{VT+7}, 11, v{VT+6}"); e(f"v_lshlrev_b32 v{VT+8}, 4, v{VT+3}"); e(f"v_add_u32 v{VT+2}, v{VT+7}, v{VT+8}")
        e("s_lshl_b32 s24, s21, 18"); e("s_lshl_b32 s25, s22, 8"); e("s_add_u32 s24, s24, s25"); e(f"v_add_u32 v{VT+2}, s24, v{VT+2}")
        e("s_lshl_b32 s34, s20, 14"); e(f"s_add_u32 s34, s34, {96*2048}")
    e(f"v_lshlrev_b32 v{VT+8}, 3, v{LN}"); e(f"v_add_u32 v{VT+8}, {T_Z}, v{VT+8}")
    e(f"ds_write_b64 v{VT+8}, v[0:1]"); e(f"ds_write_b64 v{VT+8}, v[0:1] offset:512")
    if pst: e("s_memrealtime s[74:75]")
    e("s_waitcnt lgkmcnt(0)")
    if stamps: e("s_memrealtime s[52:53]")
    e("s_barrier")
    if pst: e("s_memrealtime s[76:77]")
    def rd_w(ks):
        t, s = ks // 2, ks % 2; slot = t % NS; hi = slot >= 2; b = (slot - (2 if hi else 0)) * STG
        aw = AWH if hi else AW
        o = [f"ds_read_b128 v[{DG}:{DG+3}], v{ADG} offset:{ks*64}"]
        for nb in range(2):
            for q in range(2):
                o.append(f"ds_read_b64_tr_b16 v[{WR+4*nb+2*q}:{WR+4*nb+2*q+1}], v{aw+nb} offset:{b + s*8192 + q*1024}")
        if ks < NCD: o.append(f"ds_read_b128 v[{GB}:{GB+3}], v{AGB} offset:{ks*64}")
        return o
    def rd_x(ks):
        t, s = ks // 2, ks % 2; slot = t % NS; hi = slot >= 2; b = (slot - (2 if hi else 0)) * STG
        X = XA if ks % 2 == 0 else XB
        ax = AXH if hi else AX
        return [f"ds_read_b128 v[{X+4*mb}:{X+4*mb+3}], v{ax+s} offset:{b + mb*2048}" for mb in range(8)]
    def m4():
        return [f"v_mfma_f32_4x4x4_16b_bf16 v[{TT+4*p}:{TT+4*p+3}], v[{DG+2*(p&1)}:{DG+2*(p&1)+1}], v[{WR+2*p}:{WR+2*p+1}], 0" for p in range(4)]
    def masks():
        return [f"v_and_b32 v{DG+q}, v{DG+q}, v{MK0 if q % 2 == 0 else MK1}" for q in range(4)]
    def cvts(ks):
        WP = WPA if ks % 2 == 0 else WPB
        o = []
        for p in range(4):
            o.append(f"v_cvt_pk_bf16_f32 v{WP+2*p}, v{TT+4*p}, v{TT+4*p+1}")
            o.append(f"v_cvt_pk_bf16_f32 v{WP+2*p+1}, v{TT+4*p+2}, v{TT+4*p+3}")
        return o
    def cdm(first=False):
        return [f"v_mfma_f32_16x16x32_bf16 v[{CD+4*nb}:{CD+4*nb+3}], v[{WR+4*nb}:{WR+4*nb+3}], v[{GB}:{GB+3}], " + ("0" if first else f"v[{CD+4*nb}:{CD+4*nb+3}]") for nb in range(2)]
    def csum(ks):
        WP = WPA if ks % 2 == 0 else WPB
        return [f"v_mfma_f32_16x16x32_bf16 v[{CD+4*nb}:{CD+4*nb+3}], v[{WP+4*nb}:{WP+4*nb+3}], v[{ONE}:{ONE+3}], v[{CD+4*nb}:{CD+4*nb+3}]" for nb in range(2)]
    def mains(ks):
        WP = WPA if ks % 2 == 0 else WPB
        X = XA if ks % 2 == 0 else XB
        o = []
        order = [(nb, mb) for nb in range(2) for mb in (range(8) if nb == 0 else range(7, -1, -1))]
        if morder == "rows": order = [(nb, mb) for nb in range(2) for mb in range(8)]
        if morder == "pairs": order = [(nb if mb % 2 == 0 else 1 - nb, mb) for mb in range(8) for nb in range(2)]
        if ks == 2 * NT - 1: order = [(nb, mb) for mb in range(8) for nb in range(2)]
        for nb, mb in order:
            a = ACC + (mb * 2 + nb) * 4
            o.append(f"v_mfma_f32_16x16x32_bf16 v[{a}:{a+3}], v[{WP+4*nb}:{WP+4*nb+3}], v[{X+4*mb}:{X+4*mb+3}], " + ("0" if ks == 0 else f"v[{a}:{a+3}]"))
        return o
    def epi(mb):
        R = RQ + 2 * mb
        o = []
        if not pk:
            for nb in range(2):
                for r in range(4):
                    o.append(f"v_fma_f32 v{EE+4*nb+r}, v{CB+4*nb+r}, v{R+1}, v{DBR+4*nb+r}")
            for nb in range(2):
                for r in range(4):
                    a = ACC + (mb * 2 + nb) * 4 + r
                    o.append(f"v_fma_f32 v{a}, v{a}, v{R}, v{EE+4*nb+r}")
        for nb in range(2 if pk else 0):
            for h in range(2):
                t = EE + 4 * nb + 2 * h
                o.append(f"v_pk_fma_f32 v[{t}:{t+1}], v[{CB+4*nb+2*h}:{CB+4*nb+2*h+1}], v[{R}:{R+1}], v[{DBR+4*nb+2*h}:{DBR+4*nb+2*h+1}] op_sel:[0,1,0] op_sel_hi:[1,1,1]")
        for nb in range(2 if pk else 0):
            for h in range(2):
                a = ACC + (mb * 2 + nb) * 4 + 2 * h
                t = EE + 4 * nb + 2 * h
                o.append(f"v_pk_fma_f32 v[{a}:{a+1}], v[{a}:{a+1}], v[{R}:{R+1}], v[{t}:{t+1}] op_sel:[0,0,0] op_sel_hi:[1,0,1]")
        q = TT + 4 * (mb % 4)
        a0 = ACC + (mb * 2) * 4; a1 = a0 + 4
        o += [f"v_cvt_pk_bf16_f32 v{q}, v{a0}, v{a0+1}", f"v_cvt_pk_bf16_f32 v{q+1}, v{a0+2}, v{a0+3}",
              f"v_cvt_pk_bf16_f32 v{q+2}, v{a1}, v{a1+1}", f"v_cvt_pk_bf16_f32 v{q+3}, v{a1+2}, v{a1+3}",
              f"s_mov_b32 s33, {mb*16*2048}", "s_nop 0",
              f"v_permlane16_swap_b32 v{q}, v{q+2}", f"v_permlane16_swap_b32 v{q+1}, v{q+3}",
              (f"ds_write_b128 v{AOUT}, v[{q}:{q+3}] offset:{mb*4096}" if epi_lds else
               f"buffer_store_dwordx4 v[{q}:{q+3}], v{AOUT}, s[28:31], s33 offen {staux}")]
        if epi_lds and mb == 3: o += ["s_waitcnt lgkmcnt(0)", "s_barrier"]
        if epi_lds and mb == 7:
            o += ["s_waitcnt lgkmcnt(0)", "s_barrier"]
            o += [f"ds_read_b128 v[{XA+4*i}:{XA+4*i+3}], v{VT+i}" for i in range(2)]
            for i in range(2):
                o += [f"s_add_u32 s33, s34, {4*i*2048}", f"s_waitcnt lgkmcnt({1-i})",
                      f"buffer_store_dwordx4 v[{XA+4*i}:{XA+4*i+3}], v{VT+2}, s[28:31], s33 offen {staux}"]
        if "f" in epi_drop: o = [x for x in o if "fma" not in x]
        if "s" in epi_drop and mb < 7: o = [x for x in o if "buffer_store" not in x]
        if "p" in epi_drop: o = [x for x in o if "permlane" not in x]
        if "c" in epi_drop: o = [x for x in o if "cvt" not in x]
        return o
    if wfirst:
        for r in rd_w(0): e(r)
        e("s_waitcnt lgkmcnt(0)")
        for m in masks(): e(m)
        e("s_nop 1")
        for m in m4(): e(m)
        for m in cdm(True): e(m)
        e("s_nop 4")
        for c in cvts(0): e(c)
        for r in rd_w(1): e(r)
        e("s_barrier")
        for r in rd_x(0): e(r)
        e("s_waitcnt lgkmcnt(0)")
    else:
        for r in rd_w(0) + rd_x(0): e(r)
        e("s_waitcnt lgkmcnt(8)")
        for m in masks(): e(m)
        e("s_nop 1")
        for m in m4(): e(m)
        for m in cdm(True): e(m)
        e("s_nop 4")
        for c in cvts(0): e(c)
        for r in rd_w(1): e(r)
        e(f"s_waitcnt lgkmcnt({len(rd_w(1)) - 1})")
    NK = 2 * NT
    for ks in range(NK):
        if steps is not None:
            if ks in steps:
                i_ = steps.index(ks); e(f"s_memrealtime s[{60+4*i_}:{61+4*i_}]"); e(f"s_memtime s[{62+4*i_}:{63+4*i_}]")
        elif stamps and not land and ks % 4 == 0 and (inloop or ks == 0):
            e(f"s_memrealtime s[{60+4*(ks//4)}:{61+4*(ks//4)}]"); e(f"s_memtime s[{62+4*(ks//4)}:{63+4*(ks//4)}]")
        n1 = ks + 1 < NK; n2 = ks + 2 < NK
        rx = rd_x(ks + 1) if n1 else []
        rw = rd_w(ks + 2) if n2 else []
        mm = mains(ks)
        m4s = m4() if n1 and do_scale else []
        cv = cvts(ks + 1) if n1 and do_scale else []
        cd = cdm() if n1 and do_cd and ks + 1 < NCD else []
        if ks == NK - 1:
            e("s_waitcnt lgkmcnt(0)")
            if stamps: e("s_memrealtime s[92:93]"); e("s_memtime s[94:95]"); e("s_memrealtime s[54:55]")
            if land: e("s_waitcnt lgkmcnt(0)")
            for mb in range(8):
                e(mm[2*mb]); e(mm[2*mb+1])
                if mb >= 2:
                    for x in epi(mb - 2): e(x)
            for x in epi(6) + epi(7): e(x)
            continue
        for g in range(16):
            if g == 8 and n2 and ks % 2 == 0 and do_bar:
                if land: e(f"s_memrealtime s[{60+2*(ks//2)}:{61+2*(ks//2)}]")
                e("s_barrier")
            if g == 8 and ks == NK - 2: e("s_barrier")
            e(mm[g])
            if g < 8 and rx: e(rx[g])
            if 8 <= g < 8 + len(rw): e(rw[g-8])
            if g < 4 and n1: e(masks()[g])
            if g == M4GAP and n1:
                e(f"s_waitcnt lgkmcnt({M4GAP+1})")
                for m in m4s: e(m)
            if g == M4GAP + 1:
                for c in cd: e(c)
            if g == 1 and do_cd and ks < NCD:
                for c in csum(ks): e(c)
            if cv and M4GAP + 2 <= g < M4GAP + 10: e(cv[g - M4GAP - 2])
            if ks == NCD and g == 14:
                e(f"ds_write_b128 v{ACDW}, v[{CD}:{CD+3}]")
            if ks == NCD and g == 15:
                e(f"ds_write_b128 v{ACDW}, v[{CD+4}:{CD+7}] offset:64")
            if ks == NK - 2 and g >= 8:
                mb = g - 8
                e(f"ds_read_b64 v[{RQ+2*mb}:{RQ+2*mb+1}], v{AST} offset:{mb*128}")
                if mb < 4:
                    nb = mb >> 1
                    e(f"ds_read_b128 v[{(CB if mb % 2 == 0 else DBR)+4*nb}:{(CB if mb % 2 == 0 else DBR)+4*nb+3}], v{ACDR} offset:{nb*64 + (mb % 2)*512}")
        if n1 and ks < NK - 2:
            e(f"s_waitcnt lgkmcnt({max(len(rw) - 1, 0) + (2 if ks == NCD else 0)})")
    if stamps:
        e("s_memrealtime s[56:57]"); e("s_waitcnt vmcnt(0)")
        e("s_memrealtime s[42:43]"); e("s_memtime s[48:49]"); e("s_waitcnt lgkmcnt(0)")
        e("s_cmp_lg_u32 s20, 0"); e("s_cbranch_scc1 G_done")
        e("s_lshl_b32 s24, s2, 8"); e("s_add_u32 s44, s44, s24"); e("s_addc_u32 s45, s45, 0")
        e("s_sub_u32 s48, s48, s46"); e("s_subb_u32 s49, s49, s47")
        e("s_mov_b64 exec, 1"); e("v_mov_b32 v8, 0")
        for i, r in enumerate([40, 42, 52, 52, 54, 48, 56, 46] + [60 + 2*q for q in range(18)]):
            e(f"v_mov_b32 v4, s{r}"); e(f"v_mov_b32 v5, s{r+1}")
            e(f"global_store_dwordx2 v8, v[4:5], s[44:45] offset:{8*i}"); e("s_waitcnt vmcnt(0)")
        if land:
            e("s_add_u32 s44, s44, 0x20000"); e("s_addc_u32 s45, s45, 0")
            for i in range(15):
                e(f"v_mov_b32 v4, s{60+2*i}"); e(f"v_mov_b32 v5, s{61+2*i}")
                e(f"global_store_dwordx2 v8, v[4:5], s[44:45] offset:{8*(16+i)}"); e("s_waitcnt vmcnt(0)")
        if pst:
            e("s_add_u32 s44, s44, 0x20000"); e("s_addc_u32 s45, s45, 0")
            for i, r in enumerate((74, 52, 76, 60)):
                e(f"v_mov_b32 v4, s{r}"); e(f"v_mov_b32 v5, s{r+1}")
                e(f"global_store_dwordx2 v8, v[4:5], s[44:45] offset:{8*(4+i)}"); e("s_waitcnt vmcnt(0)")
    e.lab("G_done"); e("s_endpgm")
    e.lab("L_end")
    kd(e, KN, 256, 100)
    return e.text()

S = lambda t: ("S", t)
D = lambda j: ("D", j)
WT = ("WT",)
WX = lambda a, n: ("WX", a, n)
G = ("G",)
CFG = {
  "f": dict(),
  "late": dict(pfearly=False),
}
if __name__ == "__main__":
    open("v5.s", "w").write(gen())
    open("v5late.s", "w").write(gen(pfearly=False))
    open("v5steps_a.s", "w").write(gen(stamps=True, steps=[6,7,8,9,10,11,12,13]))
    open("v5steps_b.s", "w").write(gen(stamps=True, steps=[12,13,14,15,16,17,18,19]))
    open("v5_pf2x.s", "w").write(gen(pfslices=2))
    open("v5_nopfx.s", "w").write(gen(codepf=False))
    for n, kw in CFG.items():
        open(f"v5_{n}.s", "w").write(gen(stamps=True, pst=True, **kw)); print(n, "publish at t =", gen.pub)
        open(f"v5i_{n}.s", "w").write(gen(stamps=True, inloop=True, **kw))
        open(f"v5l_{n}.s", "w").write(gen(stamps=True, land=True, **kw))
```
